```python
import torch

def _softmax(x, axis=-1):
    return torch.softmax(x, dim=axis)
def _gelu(x):
    return torch.nn.functional.gelu(x, approximate="tanh")
def _silu(x):
    return torch.nn.functional.silu(x)
def _sigmoid(x):
    return torch.sigmoid(x)
def _layernorm(x, axis=-1, eps=1e-5):
    m = x.mean(dim=axis, keepdim=True)
    v = x.var(dim=axis, keepdim=True, unbiased=False)
    return (x - m) / torch.sqrt(v + eps)
def _scatter_add(tgt, idx, src, axis=0):
    return tgt.clone().index_add_(axis, idx, src)
def _segment_sum(src, seg, n):
    out = torch.zeros((n,) + src.shape[1:], dtype=src.dtype)
    return out.index_add_(0, seg, src)
def _pad(x, pw):
    flat = tuple(v for pair in reversed(pw) for v in pair)
    return torch.nn.functional.pad(x, flat)

kernel_name = 'recurrent_scan__softmax_full_mha__glu_gated_geglu__prompt'

def setup_inputs():

    _w = (lambda a: (lambda t: t.to(torch.bfloat16) if t.is_floating_point() else t)(torch.as_tensor(a)))
    def _A_setup():
        B, S, D = 1, 2048, 512
        return {
            "x": _w((lambda *s: torch.randn(*s, dtype=torch.bfloat16) * 0.05)(B, S, D)),
            "wqkv": _w((lambda *s: torch.randn(*s, dtype=torch.bfloat16) * 0.2)(D, 3 * D)),
            "wo": _w((lambda *s: torch.randn(*s, dtype=torch.bfloat16) * 0.2)(D, D)),
        }
    _A_in = _A_setup()

    def _B_setup():
        B, S, Dm, Df = 1, 2048, 512, 1792
        return {
            "x": _w((lambda *s: torch.randn(*s, dtype=torch.bfloat16) * 0.05)(B, S, Dm)),
            "w_gate": _w((lambda *s: torch.randn(*s, dtype=torch.bfloat16) * 0.1)(Dm, Df) * (Dm ** -0.5)),
            "w_up": _w((lambda *s: torch.randn(*s, dtype=torch.bfloat16) * 0.1)(Dm, Df) * (Dm ** -0.5)),
            "w_down": _w((lambda *s: torch.randn(*s, dtype=torch.bfloat16) * 0.1)(Df, Dm) * (Df ** -0.5)),
        }
    _B_in = _B_setup()

    return {
        "A_x": _A_in["x"],
        "A_wqkv": _A_in["wqkv"],
        "A_wo": _A_in["wo"],
        "B_x": _B_in["x"],
        "B_w_gate": _B_in["w_gate"],
        "B_w_up": _B_in["w_up"],
        "B_w_down": _B_in["w_down"],
    }

def reference(A_x, A_wqkv, A_wo, B_x, B_w_gate, B_w_up, B_w_down):
    def _A_ref(x, wqkv, wo):
        B, S, D = x.shape
        H = 32; Dh = D // H
        qkv = (lambda x, *d: x.permute(*d))((x @ wqkv).reshape(B, S, 3, H, Dh), 2, 0, 3, 1, 4)
        q, k, v = qkv[0], qkv[1], qkv[2]
        scale = Dh ** -0.5
        scores = torch.einsum("bhqd,bhkd->bhqk", q, k) * scale
        p = _softmax(scores, axis=-1)
        o = torch.einsum("bhqk,bhkd->bhqd", p, v)
        return (lambda x, *d: x.permute(*d))(o, 0, 2, 1, 3).reshape(B, S, D) @ wo

    def _B_ref(x, w_gate, w_up, w_down):
        g = torch.einsum("bsd,df->bsf", x, w_gate)
        u = torch.einsum("bsd,df->bsf", x, w_up)
        h = _gelu(g) * u
        return torch.einsum("bsf,fd->bsd", h, w_down)

    x = A_x
    xn = _layernorm(x, axis=-1)
    s = _A_ref(xn, A_wqkv, A_wo)
    g = _silu(_B_ref(xn, B_w_gate, B_w_up, B_w_down))
    return x + s * g
```

```python
class Asm:
    def __init__(self):
        self.lines = []
        self.uid = 0
    def __call__(self, s):
        for l in s.strip('\n').split('\n'):
            self.lines.append('  ' + l.strip())
    def label(self, name):
        self.lines.append(name + ':')
    def newlabel(self, p='L'):
        self.uid += 1
        return f'{p}_{self.uid}'
    def raw(self, s):
        self.lines.append(s)
    def text(self):
        return '\n'.join(self.lines) + '\n'

def kernel_head(a, name):
    a.raw('.text')
    a.raw(f'.globl {name}')
    a.raw('.p2align 8')
    a.raw(f'.type {name},@function')
    a.label(name)

def kernel_desc(a, name, vgpr, sgpr=102, accum=None):
    if accum is None:
        accum = (vgpr + 3) // 4 * 4
    a.raw('.section .rodata,"a"')
    a.raw('.p2align 6')
    a.raw(f'.amdhsa_kernel {name}')
    a.raw(f'  .amdhsa_next_free_vgpr {vgpr}')
    a.raw(f'  .amdhsa_next_free_sgpr {sgpr}')
    a.raw(f'  .amdhsa_accum_offset {accum}')
    a.raw('  .amdhsa_group_segment_fixed_size 0')
    a.raw('  .amdhsa_kernarg_size 80')
    a.raw('  .amdhsa_user_sgpr_count 2')
    a.raw('  .amdhsa_user_sgpr_kernarg_segment_ptr 1')
    a.raw('  .amdhsa_system_sgpr_workgroup_id_x 1')
    a.raw('.end_amdhsa_kernel')

def vr(b, n=1):
    return f'v{b}' if n == 1 else f'v[{b}:{b+n-1}]'
def sr(b, n=1):
    return f's{b}' if n == 1 else f's[{b}:{b+n-1}]'

MB = 1 << 20
WS_XN = 0
WS_Q = 2 * MB
WS_K = 4 * MB
WS_V = 6 * MB
WS_H = 8 * MB
WS_O = 16 * MB
WS_F = 18 * MB
```

```python
from asmlib import *

def gen_ln(a):
    name = 'ln_kernel'
    kernel_head(a, name)
    a(f'''
    s_cmp_ge_u32 s2, 256
    s_cbranch_scc1 {name}_end
    s_load_dwordx2 s[4:5], s[0:1], 0
    s_load_dwordx2 s[6:7], s[0:1], 72
    v_lshrrev_b32 v1, 6, v0
    v_and_b32 v2, 63, v0
    s_lshl_b32 s3, s2, 3
    v_lshlrev_b32 v1, 1, v1
    v_add_u32 v1, s3, v1
    v_lshlrev_b32 v1, 10, v1
    v_lshlrev_b32 v2, 4, v2
    v_add_u32 v1, v1, v2
    s_waitcnt lgkmcnt(0)
    global_load_dwordx4 v[4:7], v1, s[4:5]
    global_load_dwordx4 v[8:11], v1, s[4:5] offset:1024
    s_mov_b32 s8, 0x3b000000
    s_mov_b32 s9, 0x3727c5ac
    s_waitcnt vmcnt(0)
    ''')
    for r in range(2):
        for i in range(4):
            a(f'v_lshlrev_b32 v{16+8*r+2*i}, 16, v{4+4*r+i}')
            a(f'v_and_b32 v{17+8*r+2*i}, 0xffff0000, v{4+4*r+i}')
    def reduce2(x0, x1, t0, t1):
        for pat in ['quad_perm:[1,0,3,2]', 'quad_perm:[2,3,0,1]', 'row_half_mirror', 'row_mirror']:
            a('s_nop 1')
            a(f'v_add_f32_dpp v{x0}, v{x0}, v{x0} {pat} row_mask:0xf bank_mask:0xf')
            a(f'v_add_f32_dpp v{x1}, v{x1}, v{x1} {pat} row_mask:0xf bank_mask:0xf')
        for sw in ['v_permlane16_swap_b32', 'v_permlane32_swap_b32']:
            a(f'v_mov_b32 v{t0}, v{x0}')
            a(f'v_mov_b32 v{t1}, v{x1}')
            a('s_nop 1')
            a(f'{sw} v{x0}, v{t0}')
            a(f'{sw} v{x1}, v{t1}')
            a('s_nop 1')
            a(f'v_add_f32 v{x0}, v{x0}, v{t0}')
            a(f'v_add_f32 v{x1}, v{x1}, v{t1}')
    for r in range(2):
        b = 16 + 8 * r
        a(f'v_add_f32 v{32+r}, v{b}, v{b+1}')
        for i in range(2, 8):
            a(f'v_add_f32 v{32+r}, v{32+r}, v{b+i}')
    reduce2(32, 33, 34, 35)
    for r in range(2):
        a(f'v_mul_f32 v{32+r}, s8, v{32+r}')
    for r in range(2):
        b = 16 + 8 * r
        for i in range(8):
            a(f'v_sub_f32 v{b+i}, v{b+i}, v{32+r}')
    for r in range(2):
        b = 16 + 8 * r
        a(f'v_mul_f32 v{36+r}, v{b}, v{b}')
        for i in range(1, 8):
            a(f'v_fmac_f32 v{36+r}, v{b+i}, v{b+i}')
    reduce2(36, 37, 34, 35)
    for r in range(2):
        a(f'v_mov_b32 v{38+r}, s9')
        a(f'v_fmac_f32 v{38+r}, s8, v{36+r}')
    for r in range(2):
        a(f'v_rsq_f32 v{38+r}, v{38+r}')
    a('s_nop 0')
    for r in range(2):
        b = 16 + 8 * r
        for i in range(8):
            a(f'v_mul_f32 v{b+i}, v{b+i}, v{38+r}')
    for r in range(2):
        b = 16 + 8 * r
        for i in range(4):
            a(f'v_cvt_pk_bf16_f32 v{4+4*r+i}, v{b+2*i}, v{b+2*i+1}')
    a('''
    global_store_dwordx4 v1, v[4:7], s[6:7]
    global_store_dwordx4 v1, v[8:11], s[6:7] offset:1024
    ''')
    a.label(f'{name}_end')
    a('s_endpgm')
    kernel_desc(a, name, 40, 16)
    return (name, 256, 256, 0)
```

```python
from asmlib import *
import struct
def f2h(x):
    return '0x%08x' % struct.unpack('<I', struct.pack('<f', x))[0]

LOG2E = 1.4426950408889634
STAGE = 28672
NST = 4
NCH = 16

def gen_gemm1(a):
    name = 'gemm1_kernel'
    kernel_head(a, name)
    V_LANE = 1
    V_OFFA = 2
    V_OFFB = [3, 4, 5]
    V_RDA = [6, 7]
    V_RDB = [[8, 9], [10, 11]]
    V_RDU = [12, 13]
    V_T = [14, 15, 16, 17, 18, 19]
    V_X = [[20 + 16 * s + 4 * r for r in range(4)] for s in range(2)]
    V_W = [[52 + 20 * s + 4 * u for u in range(5)] for s in range(2)]
    V_ACC = [[92 + 16 * u + 4 * r for r in range(4)] for u in range(5)]
    NV = 172
    a(f'''
    s_cmp_ge_u32 s2, 256
    s_cbranch_scc1 {name}_end
    s_load_dwordx2 s[4:5], s[0:1], 72
    s_load_dwordx2 s[6:7], s[0:1], 8
    s_load_dwordx2 s[8:9], s[0:1], 32
    s_load_dwordx2 s[10:11], s[0:1], 40
    v_lshrrev_b32 v14, 6, v0
    v_and_b32 v{V_LANE}, 63, v0
    s_and_b32 s3, s2, 7
    v_readfirstlane_b32 s14, v14
    s_lshr_b32 s15, s2, 3
    s_and_b32 s12, s3, 1
    s_lshl_b32 s12, s12, 3
    s_and_b32 s16, s15, 7
    s_add_u32 s12, s12, s16        ; mi
    s_lshr_b32 s13, s3, 1
    s_lshl_b32 s13, s13, 2
    s_lshr_b32 s16, s15, 3
    s_add_u32 s13, s13, s16        ; nj
    ''')
    L = V_LANE
    t0, t1, t2, t3 = V_T[:4]
    a(f'''
    v_lshrrev_b32 v{t0}, 4, v{L}
    v_lshlrev_b32 v{t0}, 1, v{t0}
    v_mov_b32 v{t1}, 0x78
    v_lshrrev_b32 v{t1}, v{t0}, v{t1}
    v_and_b32 v{t1}, 3, v{t1}
    v_and_b32 v{t2}, 3, v{L}
    v_xor_b32 v{t1}, v{t1}, v{t2}
    v_lshlrev_b32 v{t1}, 4, v{t1}
    v_lshrrev_b32 v{t2}, 2, v{L}
    v_lshlrev_b32 v{t2}, 10, v{t2}
    v_add_u32 v{V_OFFA}, v{t1}, v{t2}
    ''')
    a(f'''
    v_and_b32 v{t0}, 15, v{L}
    v_lshrrev_b32 v{t1}, 2, v{t0}
    v_lshlrev_b32 v{t1}, 1, v{t1}
    v_mov_b32 v{t2}, 0x78
    v_lshrrev_b32 v{t2}, v{t1}, v{t2}
    v_and_b32 v{t2}, 3, v{t2}
    v_lshrrev_b32 v{t1}, 4, v{L}
    v_xor_b32 v{t2}, v{t2}, v{t1}
    v_lshlrev_b32 v{t2}, 4, v{t2}
    v_lshlrev_b32 v{t0}, 6, v{t0}
    v_add_u32 v{t0}, v{t0}, v{t2}
    s_and_b32 s16, s14, 1
    s_lshl_b32 s16, s16, 12
    v_add_u32 v{V_RDA[0]}, s16, v{t0}
    v_add_u32 v{V_RDA[1]}, {2*STAGE}, v{V_RDA[0]}
    ''')
    a(f'''
    v_lshrrev_b32 v{t0}, 4, v{L}
    v_and_b32 v{t1}, 15, v{L}
    v_lshrrev_b32 v{t2}, 2, v{t1}
    v_lshl_add_u32 v{t2}, v{t0}, 2, v{t2}
    v_and_b32 v{t1}, 3, v{t1}
    v_lshlrev_b32 v{t1}, 3, v{t1}
    v_and_b32 v{t0}, 1, v{t0}
    v_lshlrev_b32 v{t0}, 5, v{t0}
    v_lshl_add_u32 v{t3}, v{t2}, 6, v{t1}
    v_add_u32 v{V_RDB[0][0]}, v{t3}, v{t0}
    v_xor_b32 v{V_RDB[1][0]}, 32, v{V_RDB[0][0]}
    v_add_u32 v{V_RDB[0][1]}, {2*STAGE}, v{V_RDB[0][0]}
    v_add_u32 v{V_RDB[1][1]}, {2*STAGE}, v{V_RDB[1][0]}
    v_lshl_add_u32 v{V_RDU[0]}, v{t2}, 5, v{t1}
    v_add_u32 v{V_RDU[1]}, {2*STAGE}, v{V_RDU[0]}
    s_waitcnt lgkmcnt(0)
    ''')
    a(f'''
    s_lshl_b32 s16, s12, 17
    s_lshl_b32 s17, s14, 14
    s_add_u32 s16, s16, s17
    s_add_u32 s16, s4, s16
    s_addc_u32 s17, s5, 0
    s_lshl_b32 s24, s14, 10
    ''')
    def b_params(bi):
        if bi < 18:
            b, rh = bi >> 1, bi & 1
            if b < 3:
                return (6, 3072, (64, 1024 * b), 'pair', rh, 8192 + b * 2048 + rh * 1024)
            elif b < 6:
                return (8, 3584, (224, 64 * (b - 3)), 'pair', rh, 8192 + b * 2048 + rh * 1024)
            else:
                return (10, 3584, (224, 64 * (b - 6)), 'pair', rh, 8192 + b * 2048 + rh * 1024)
        else:
            return (8 if bi == 18 else 10, 3584, (224, 192), 'unit', 0, 26624 + (bi - 18) * 1024)
    RS = {}
    for w in range(8):
        a(f's_cmp_eq_u32 s14, {w}')
        a(f's_cbranch_scc1 {name}_w{w}')
    for w in range(8):
        a.label(f'{name}_w{w}')
        bis = [w, w + 8] + ([w + 16] if w < 4 else [])
        for j, bi in enumerate(bis):
            src, rs, (mul, add), kind, rh, dest = b_params(bi)
            sb = 18 + 2 * j
            a(f'''
            s_mul_i32 s{sb}, s13, {mul}
            s_add_u32 s{sb}, s{sb}, {add}
            s_add_u32 s{sb}, s{src}, s{sb}
            s_addc_u32 s{sb+1}, s{src+1}, 0
            s_mov_b32 s{25+j}, {dest}
            s_mov_b32 s{28+j}, {32*rs}
            ''')
            vo = V_OFFB[j]
            if kind == 'pair':
                a(f'''
                v_lshrrev_b32 v{t0}, 2, v{L}
                v_and_b32 v{t0}, 3, v{t0}
                v_lshrrev_b32 v{t1}, 4, v{L}
                v_lshl_add_u32 v{t0}, v{t1}, 3, v{t0}
                v_add_u32 v{t0}, {4*rh}, v{t0}
                v_mul_u32_u24 v{t0}, {rs}, v{t0}
                v_lshrrev_b32 v{t2}, 1, v{L}
                v_xor_b32 v{t2}, v{t2}, v{t1}
                v_and_b32 v{t2}, 1, v{t2}
                v_lshlrev_b32 v{t2}, 5, v{t2}
                v_and_b32 v{t3}, 1, v{L}
                v_lshlrev_b32 v{t3}, 4, v{t3}
                v_add3_u32 v{vo}, v{t0}, v{t2}, v{t3}
                ''')
            else:
                a(f'''
                v_lshrrev_b32 v{t0}, 1, v{L}
                v_and_b32 v{t0}, 3, v{t0}
                v_lshrrev_b32 v{t1}, 5, v{L}
                v_lshl_add_u32 v{t0}, v{t1}, 2, v{t0}
                v_lshrrev_b32 v{t1}, 3, v{L}
                v_and_b32 v{t1}, 3, v{t1}
                v_lshl_add_u32 v{t0}, v{t1}, 3, v{t0}
                v_mul_u32_u24 v{t0}, {rs}, v{t0}
                v_and_b32 v{t3}, 1, v{L}
                v_lshlrev_b32 v{t3}, 4, v{t3}
                v_add_u32 v{vo}, v{t0}, v{t3}
                ''')
        a(f's_branch {name}_wc{w>>1}')

    cols = {
        0: [('g', 3, 0, 0), ('g', 3, 1, 1), ('u', 6, 0, 0), ('u', 6, 1, 1), ('q', 0, 0, 0)],
        1: [('g', 4, 0, 2), ('g', 4, 1, 3), ('u', 7, 0, 2), ('u', 7, 1, 3), ('q', 0, 1, 1)],
        2: [('g', 5, 0, 4), ('g', 5, 1, 5), ('u', 8, 0, 4), ('u', 8, 1, 5), ('k', 1, 0, 0)],
        3: [('g', -1, 0, 6), ('u', -1, 1, 6), ('k', 1, 1, 1), ('v', 2, 0, 0), ('v', 2, 1, 1)],
    }
    def dma(c, nb):
        st = (c % NST) * STAGE
        a(f's_add_u32 m0, s24, {st}')
        a('s_nop 0')
        a(f'global_load_lds_dwordx4 v{V_OFFA}, s[16:17]')
        a('s_add_u32 s16, s16, 64')
        a('s_addc_u32 s17, s17, 0')
        for j in range(nb):
            sb = 18 + 2 * j
            a(f's_add_u32 m0, s{25+j}, {st}')
            a('s_nop 0')
            a(f'global_load_lds_dwordx4 v{V_OFFB[j]}, s[{sb}:{sb+1}]')
            a(f's_add_u32 s{sb}, s{sb}, s{28+j}')
            a(f's_addc_u32 s{sb+1}, s{sb+1}, 0')
    def reads(c, units):
        s = c & 1
        stg = c % NST
        st_set = stg >> 1
        st_off = (stg & 1) * STAGE
        for r in range(4):
            a(f'ds_read_b128 {vr(V_X[s][r],4)}, v{V_RDA[st_set]} offset:{st_off + r*1024}')
        for ui, (ty, b, u, idx) in enumerate(units):
            for jhi in range(2):
                if b >= 0:
                    a(f'ds_read_b64_tr_b16 {vr(V_W[s][ui]+2*jhi,2)}, v{V_RDB[u][st_set]} offset:{st_off + 8192 + b*2048 + jhi*1024}')
                else:
                    a(f'ds_read_b64_tr_b16 {vr(V_W[s][ui]+2*jhi,2)}, v{V_RDU[st_set]} offset:{st_off + 26624 + u*1024 + jhi*512}')
    def mfmas(c, units):
        s = c & 1
        for r in range(4):
            for ui, (ty, b, u, idx) in enumerate(units):
                acc = vr(V_ACC[ui][r], 4)
                cc = acc if c > 0 else '0'
                if ty == 'v':
                    a(f'v_mfma_f32_16x16x32_bf16 {acc}, {vr(V_X[s][r],4)}, {vr(V_W[s][ui],4)}, {cc}')
                else:
                    a(f'v_mfma_f32_16x16x32_bf16 {acc}, {vr(V_W[s][ui],4)}, {vr(V_X[s][r],4)}, {cc}')
    for wc in range(4):
        units = cols[wc]
        nb = 3 if wc < 2 else 2
        n = nb + 1
        a.label(f'{name}_wc{wc}')
        for c in range(NST):
            dma(c, nb)
        a(f's_waitcnt vmcnt({3*n})')
        a('s_barrier')
        reads(0, units)
        for c in range(NCH):
            if c + 1 < NCH:
                rem = min(c + 3, NCH - 1) - (c + 1)
                a(f's_waitcnt vmcnt({rem*n}) lgkmcnt(0)')
                a('s_barrier')
                if c + 4 < NCH:
                    dma(c + 4, nb)
                reads(c + 1, units)
            else:
                a('s_waitcnt lgkmcnt(0)')
            mfmas(c, units)
        a('s_nop 7')
        a('s_nop 7')
        a(f'''
        s_and_b32 s30, s14, 1
        s_lshl_b32 s30, s30, 6
        s_lshl_b32 s31, s12, 7
        s_add_u32 s30, s30, s31       ; row0
        v_and_b32 v{t0}, 15, v{L}
        v_lshrrev_b32 v{t1}, 4, v{L}
        ''')
        pairs = {}
        for ui, (ty, b, u, idx) in enumerate(units):
            if ty in 'gu':
                pairs.setdefault(idx, {})[ty] = ui
        vH = V_T[4]
        a(f'''
        v_mul_u32_u24 v{vH}, 3584, v{t0}
        v_lshl_add_u32 v{vH}, v{t1}, 3, v{vH}
        s_mul_i32 s32, s30, 3584
        s_mul_i32 s33, s13, 224
        s_add_u32 s32, s32, s33
        s_add_u32 s32, s32, {WS_H}
        s_add_u32 s32, s4, s32
        s_addc_u32 s33, s5, 0
        s_mov_b32 s40, {f2h(-2*LOG2E*0.7978845608028654)}
        s_mov_b32 s41, {f2h(-2*LOG2E*0.7978845608028654*0.044715)}
        s_mov_b32 s42, {f2h(0.25*LOG2E)}
        v_mov_b32 v{V_T[5]}, s40
        ''')
        T = 20
        for r in range(4):
            for idx, d in sorted(pairs.items()):
                g = V_ACC[d['g']][r]
                u = V_ACC[d['u']][r]
                for i in range(4):
                    a(f'v_mul_f32 v{T+i}, v{g+i}, v{g+i}')
                for i in range(4):
                    a(f'v_fma_f32 v{T+i}, v{T+i}, s41, v{V_T[5]}')
                for i in range(4):
                    a(f'v_mul_f32 v{T+i}, v{T+i}, v{g+i}')
                for i in range(4):
                    a(f'v_exp_f32 v{T+i}, v{T+i}')
                a('s_nop 0')
                for i in range(4):
                    a(f'v_add_f32 v{T+i}, 1.0, v{T+i}')
                for i in range(4):
                    a(f'v_rcp_f32 v{T+i}, v{T+i}')
                for i in range(4):
                    a(f'v_mul_f32 v{T+4+i}, v{g+i}, v{u+i}')
                for i in range(4):
                    a(f'v_mul_f32 v{T+i}, v{T+i}, v{T+4+i}')
                T2 = T + 8 + 2 * (idx & 1) + 4 * (r & 1)
                a(f'v_cvt_pk_bf16_f32 v{T2}, v{T}, v{T+1}')
                a(f'v_cvt_pk_bf16_f32 v{T2+1}, v{T+2}, v{T+3}')
                a(f'global_store_dwordx2 v{vH}, {vr(T2,2)}, s[32:33] offset:{32*idx}')
            if r < 3:
                a('s_add_u32 s32, s32, 57344')
                a('s_addc_u32 s33, s33, 0')
        vQK = V_T[4]
        vV = V_T[5]
        a(f'''
        v_lshlrev_b32 v{vQK}, 4, v{t0}
        v_lshrrev_b32 v{t2}, 1, v{t1}
        v_lshl_add_u32 v{vQK}, v{t2}, 9, v{vQK}
        v_and_b32 v{t3}, 1, v{t1}
        v_lshl_add_u32 v{vQK}, v{t3}, 3, v{vQK}
        v_lshlrev_b32 v{vV}, 4, v{t0}
        v_lshl_add_u32 v{vV}, v{t3}, 8, v{vV}
        v_lshl_add_u32 v{vV}, v{t2}, 3, v{vV}
        s_lshl_b32 s34, s30, 5
        s_lshl_b32 s35, s13, 17
        s_add_u32 s34, s34, s35
        ''')
        T = 40
        for ui, (ty, b, u, idx) in enumerate(units):
            if ty in 'gu':
                continue
            wsoff = {'q': WS_Q, 'k': WS_K, 'v': WS_V}[ty] + idx * 65536
            a(f'''
            s_add_u32 s36, s34, {wsoff}
            s_add_u32 s36, s4, s36
            s_addc_u32 s37, s5, 0
            ''')
            for r in range(4):
                acc = V_ACC[ui][r]
                if ty == 'q':
                    for i in range(4):
                        a(f'v_mul_f32 v{acc+i}, s42, v{acc+i}')
                T2 = T + 2 * r + 8 * (ui & 1)
                a(f'v_cvt_pk_bf16_f32 v{T2}, v{acc}, v{acc+1}')
                a(f'v_cvt_pk_bf16_f32 v{T2+1}, v{acc+2}, v{acc+3}')
                if ty == 'v':
                    a(f'global_store_dwordx2 v{vV}, {vr(T2,2)}, s[36:37] offset:{512*r}')
                else:
                    a(f'global_store_dwordx2 v{vQK}, {vr(T2,2)}, s[36:37] offset:{(r>>1)*1024 + (r&1)*256}')
        a('s_endpgm')
    a.label(f'{name}_end')
    a('s_endpgm')
    kernel_desc(a, name, NV, 48)
    return (name, 256, 512, NST * STAGE)
```

```python
from asmlib import *
from k1_gemm1 import f2h

def gen_attn(a):
    name = 'attn_kernel'
    kernel_head(a, name)
    V_LANE = 1
    V_KA = 2
    V_VA = 3
    V_Q = 4
    V_KF = [8, 12]
    V_VF = [[16, 20], [24, 28]]
    V_S = [32, 48]
    V_P = 64
    V_O = 72
    V_NM = 88
    V_T = [104, 105, 106, 107, 108, 109]
    NV = 112
    L = V_LANE
    t0, t1, t2, t3 = V_T[:4]
    a(f'''
    s_cmp_ge_u32 s2, 256
    s_cbranch_scc1 {name}_end
    s_load_dwordx2 s[4:5], s[0:1], 72
    v_lshrrev_b32 v{t0}, 6, v0
    v_and_b32 v{L}, 63, v0
    s_and_b32 s3, s2, 7
    v_readfirstlane_b32 s14, v{t0}
    s_lshr_b32 s15, s2, 3
    s_and_b32 s12, s15, 3
    s_lshl_b32 s3, s3, 2
    s_add_u32 s12, s12, s3       ; head
    s_lshr_b32 s13, s2, 5        ; qblock
    s_lshl_b32 s13, s13, 3
    s_add_u32 s13, s13, s14      ; qtile
    v_lshlrev_b32 v{V_KA}, 4, v{L}
    s_lshl_b32 s16, s12, 16      ; head*65536
    s_lshl_b32 s17, s13, 10      ; qtile*1024
    s_lshl_b32 s18, s14, 10      ; w*1024
    s_waitcnt lgkmcnt(0)
    s_add_u32 s20, s4, s16
    s_addc_u32 s21, s5, 0
    s_add_u32 s22, s20, s17
    s_addc_u32 s23, s21, 0
    s_add_u32 s22, s22, {WS_Q}
    s_addc_u32 s23, s23, 0
    global_load_dwordx4 {vr(V_Q,4)}, v{V_KA}, s[22:23]
    s_add_u32 s24, s20, s18
    s_addc_u32 s25, s21, 0
    s_add_u32 s26, s24, {WS_V}
    s_addc_u32 s27, s25, 0
    s_add_u32 s24, s24, {WS_K}
    s_addc_u32 s25, s25, 0
    ''')
    for c in range(8):
        a(f'''
        s_add_u32 m0, s18, {c*8192}
        s_nop 0
        global_load_lds_dwordx4 v{V_KA}, s[24:25]
        s_add_u32 m0, s18, {65536 + c*8192}
        s_nop 0
        global_load_lds_dwordx4 v{V_KA}, s[26:27]
        ''')
        if c < 7:
            a('''
            s_add_u32 s24, s24, 8192
            s_addc_u32 s25, s25, 0
            s_add_u32 s26, s26, 8192
            s_addc_u32 s27, s27, 0
            ''')
    a(f'''
    v_lshrrev_b32 v{t0}, 5, v{L}
    v_and_b32 v{t1}, 15, v{L}
    v_lshlrev_b32 v{t1}, 4, v{t1}
    v_lshl_add_u32 v{V_VA}, v{t0}, 8, v{t1}
    v_add_u32 v{V_VA}, 0x10000, v{V_VA}
    s_mov_b32 s28, 0x0000ffff
    s_mov_b32 s29, 0x0000ffff
    ''')
    for s in range(2):
        for h in range(2):
            for i in range(4):
                a(f'v_mov_b32 v{V_VF[s][h]+i}, 0x3f803f80')
    def rdK(t, koff):
        a(f'ds_read_b128 {vr(V_KF[t&1],4)}, v{V_KA} offset:{koff}')
    def rdV(t, voff):
        a('s_mov_b64 exec, s[28:29]')
        a(f'ds_read_b128 {vr(V_VF[t&1][0],4)}, v{V_VA} offset:{voff}')
        a(f'ds_read_b128 {vr(V_VF[t&1][1],4)}, v{V_VA} offset:{voff+512}')
        a('s_mov_b64 exec, -1')
    def qk(t, c=None):
        cc = vr(V_NM, 16) if c is None else c
        a(f'v_mfma_f32_32x32x16_bf16 {vr(V_S[t&1],16)}, {vr(V_KF[t&1],4)}, {vr(V_Q,4)}, {cc}')
    a('s_waitcnt vmcnt(14)')
    a('s_barrier')
    rdK(0, 0)
    a('s_waitcnt lgkmcnt(0)')
    qk(0, '0')
    rdK(1, 1024)
    rdV(0, 0)
    a('s_nop 15')
    S = V_S[0]
    a(f'v_max3_f32 v{t0}, v{S}, v{S+1}, v{S+2}')
    for i in range(3, 15, 2):
        a(f'v_max3_f32 v{t0}, v{t0}, v{S+i}, v{S+i+1}')
    a(f'v_max_f32 v{t0}, v{t0}, v{S+15}')
    a(f'''
    v_mov_b32 v{t1}, v{t0}
    s_nop 1
    v_permlane32_swap_b32 v{t0}, v{t1}
    s_nop 1
    v_max_f32 v{t0}, v{t0}, v{t1}
    v_add_f32 v{t0}, 0x42700000, v{t0}
    v_sub_f32 v{t0}, 0, v{t0}
    ''')
    for i in range(16):
        a(f'v_mov_b32 v{V_NM+i}, v{t0}')
    for i in range(16):
        a(f'v_mov_b32 v{V_O+i}, 0')
    a('s_nop 1')
    qk(0)

    def tile(t, koff2, voff1):
        a('s_waitcnt lgkmcnt(0)')
        qk(t + 1)
        S = V_S[t & 1]
        for i in range(8):
            a(f'v_exp_f32 v{S+i}, v{S+i}')
        rdK(t + 2, koff2)
        for i in range(4):
            a(f'v_cvt_pk_bf16_f32 v{V_P+i}, v{S+2*i}, v{S+2*i+1}')
        for i in range(8, 16):
            a(f'v_exp_f32 v{S+i}, v{S+i}')
        a(f'v_mfma_f32_32x32x16_bf16 {vr(V_O,16)}, {vr(V_VF[t&1][0],4)}, {vr(V_P,4)}, {vr(V_O,16)}')
        rdV(t + 1, voff1)
        for i in range(4, 8):
            a(f'v_cvt_pk_bf16_f32 v{V_P+i}, v{S+2*i}, v{S+2*i+1}')
        a('s_nop 1')
        a(f'v_mfma_f32_32x32x16_bf16 {vr(V_O,16)}, {vr(V_VF[t&1][1],4)}, {vr(V_P+4,4)}, {vr(V_O,16)}')

    for t in range(16):
        if t == 6:
            a('s_waitcnt vmcnt(12)')
            a('s_barrier')
        if t == 14:
            a('s_waitcnt vmcnt(0)')
            a('s_barrier')
        tile(t, (t + 2) * 1024, (t + 1) * 1024)
    a(f'''
    v_add_u32 v{V_KA}, 16384, v{V_KA}
    v_add_u32 v{V_VA}, 16384, v{V_VA}
    s_mov_b32 s30, 6
    ''')
    a.label(f'{name}_loop')
    for t in range(8):
        tile(t, (t + 2) * 1024, (t + 1) * 1024)
    a(f'''
    v_add_u32 v{V_KA}, 8192, v{V_KA}
    v_add_u32 v{V_VA}, 8192, v{V_VA}
    s_sub_u32 s30, s30, 1
    s_cmp_lg_u32 s30, 0
    s_cbranch_scc1 {name}_loop
    s_nop 15
    s_waitcnt lgkmcnt(0)
    ''')
    a(f'''
    v_rcp_f32 v{t0}, v{V_O+8}
    v_and_b32 v{t1}, 31, v{L}
    v_lshrrev_b32 v{t2}, 5, v{L}
    v_lshlrev_b32 v{t1}, 10, v{t1}
    v_lshl_add_u32 v{t1}, v{t2}, 3, v{t1}
    s_lshl_b32 s16, s13, 15
    s_lshl_b32 s17, s12, 5
    s_add_u32 s16, s16, s17
    s_add_u32 s16, s16, {WS_O}
    s_add_u32 s16, s4, s16
    s_addc_u32 s17, s5, 0
    ''')
    for i in range(8):
        a(f'v_mul_f32 v{V_O+i}, v{V_O+i}, v{t0}')
    for i in range(4):
        a(f'v_cvt_pk_bf16_f32 v{V_P+i}, v{V_O+2*i}, v{V_O+2*i+1}')
    a(f'''
    global_store_dwordx2 v{t1}, {vr(V_P,2)}, s[16:17]
    global_store_dwordx2 v{t1}, {vr(V_P+2,2)}, s[16:17] offset:16
    ''')
    a.label(f'{name}_end')
    a('s_endpgm')
    kernel_desc(a, name, NV, 40)
    return (name, 256, 512, 131072)
```

```python
from asmlib import *
from k1_gemm1 import f2h, LOG2E

def gen_out(a):
    name = 'outp_kernel'
    kernel_head(a, name)
    STG = 16384
    NST = 6
    V_LANE = 1
    V_OFFA = [2, 3]
    V_OFFB = 4
    V_RDA = [5, 6]
    V_RDB = [[7, 8], [9, 10]]
    V_T = [11, 12, 13, 14, 15, 16, 17, 18]
    V_X = [[[20 + 16 * s + 8 * k + 4 * r for r in range(2)] for k in range(2)] for s in range(2)]
    V_W = [[[52 + 16 * s + 8 * k + 4 * u for u in range(2)] for k in range(2)] for s in range(2)]
    V_ACC = [[[84 + 16 * p + 8 * u + 4 * r for r in range(2)] for u in range(2)] for p in range(2)]
    NV = 116
    L = V_LANE
    t0, t1, t2, t3 = V_T[:4]
    a(f'''
    s_cmp_ge_u32 s2, 256
    s_cbranch_scc1 {name}_end
    s_load_dwordx2 s[4:5], s[0:1], 72
    s_load_dwordx2 s[6:7], s[0:1], 16
    s_load_dwordx2 s[8:9], s[0:1], 48
    s_load_dwordx2 s[10:11], s[0:1], 0
    s_load_dwordx2 s[44:45], s[0:1], 56
    v_lshrrev_b32 v{t0}, 6, v0
    v_and_b32 v{L}, 63, v0
    s_and_b32 s3, s2, 7
    v_readfirstlane_b32 s14, v{t0}
    s_lshr_b32 s15, s2, 3
    s_and_b32 s12, s15, 3
    s_lshl_b32 s3, s3, 2
    s_add_u32 s12, s12, s3       ; mi (0..31)
    s_lshr_b32 s13, s15, 2       ; nj (0..7)
    ''')
    a(f'''
    v_lshrrev_b32 v{t0}, 4, v{L}
    v_lshlrev_b32 v{t0}, 1, v{t0}
    v_mov_b32 v{t1}, 0x78
    v_lshrrev_b32 v{t1}, v{t0}, v{t1}
    v_and_b32 v{t1}, 3, v{t1}
    v_and_b32 v{t2}, 3, v{L}
    v_xor_b32 v{t1}, v{t1}, v{t2}
    v_lshlrev_b32 v{t1}, 4, v{t1}
    v_lshrrev_b32 v{t2}, 2, v{L}
    v_lshl_add_u32 v{V_OFFA[0]}, v{t2}, 10, v{t1}
    v_mul_u32_u24 v{t2}, 3584, v{t2}
    v_add_u32 v{V_OFFA[1]}, v{t2}, v{t1}
    ''')
    a(f'''
    v_and_b32 v{t0}, 15, v{L}
    v_lshrrev_b32 v{t1}, 2, v{t0}
    v_lshlrev_b32 v{t1}, 1, v{t1}
    v_mov_b32 v{t2}, 0x78
    v_lshrrev_b32 v{t2}, v{t1}, v{t2}
    v_and_b32 v{t2}, 3, v{t2}
    v_lshrrev_b32 v{t1}, 4, v{L}
    v_xor_b32 v{t2}, v{t2}, v{t1}
    v_lshlrev_b32 v{t2}, 4, v{t2}
    v_lshlrev_b32 v{t0}, 6, v{t0}
    v_add_u32 v{t0}, v{t0}, v{t2}
    s_and_b32 s16, s14, 1
    s_lshl_b32 s16, s16, 11
    v_add_u32 v{V_RDA[0]}, s16, v{t0}
    v_add_u32 v{V_RDA[1]}, {3*STG}, v{V_RDA[0]}
    v_lshrrev_b32 v{t0}, 4, v{L}
    v_and_b32 v{t1}, 15, v{L}
    v_lshrrev_b32 v{t2}, 2, v{t1}
    v_lshl_add_u32 v{t2}, v{t0}, 2, v{t2}
    v_and_b32 v{t1}, 3, v{t1}
    v_lshlrev_b32 v{t1}, 3, v{t1}
    v_and_b32 v{t0}, 1, v{t0}
    v_lshlrev_b32 v{t0}, 5, v{t0}
    v_lshl_add_u32 v{t3}, v{t2}, 6, v{t1}
    v_add_u32 v{t3}, v{t3}, v{t0}
    s_lshr_b32 s16, s14, 1
    s_lshl_b32 s16, s16, 11
    s_add_u32 s16, s16, 4096
    v_add_u32 v{V_RDB[0][0]}, s16, v{t3}
    v_xor_b32 v{V_RDB[1][0]}, 32, v{V_RDB[0][0]}
    v_add_u32 v{V_RDB[0][1]}, {3*STG}, v{V_RDB[0][0]}
    v_add_u32 v{V_RDB[1][1]}, {3*STG}, v{V_RDB[1][0]}
    ''')
    a(f'''
    v_lshrrev_b32 v{t0}, 2, v{L}
    v_and_b32 v{t0}, 3, v{t0}
    v_lshrrev_b32 v{t1}, 4, v{L}
    v_lshl_add_u32 v{t0}, v{t1}, 3, v{t0}
    s_and_b32 s16, s14, 1
    s_lshl_b32 s16, s16, 2
    v_add_u32 v{t0}, s16, v{t0}
    v_lshlrev_b32 v{t0}, 10, v{t0}
    v_lshrrev_b32 v{t2}, 1, v{L}
    v_xor_b32 v{t2}, v{t2}, v{t1}
    v_and_b32 v{t2}, 1, v{t2}
    v_lshlrev_b32 v{t2}, 5, v{t2}
    v_and_b32 v{t3}, 1, v{L}
    v_lshlrev_b32 v{t3}, 4, v{t3}
    v_add3_u32 v{V_OFFB}, v{t0}, v{t2}, v{t3}
    s_waitcnt lgkmcnt(0)
    ''')
    a(f'''
    s_lshl_b32 s16, s12, 6
    s_lshl_b32 s17, s14, 4
    s_add_u32 s16, s16, s17
    s_lshl_b32 s18, s16, 10
    s_add_u32 s18, s18, {WS_O}
    s_add_u32 s20, s4, s18
    s_addc_u32 s21, s5, 0            ; O source
    s_mul_i32 s18, s16, 3584
    s_add_u32 s18, s18, {WS_H}
    s_add_u32 s22, s4, s18
    s_addc_u32 s23, s5, 0            ; H source
    s_lshl_b32 s18, s13, 7
    s_lshr_b32 s19, s14, 1
    s_lshl_b32 s19, s19, 6
    s_add_u32 s18, s18, s19
    s_add_u32 s24, s6, s18
    s_addc_u32 s25, s7, 0            ; wo
    s_add_u32 s26, s8, s18
    s_addc_u32 s27, s9, 0            ; w_down
    s_lshl_b32 s28, s14, 10          ; A dest = w*1024
    s_add_u32 s29, s28, 4096         ; B dest
    ''')
    NDC = 36
    def dma(dc):
        st = (dc % NST) * STG
        ph = 0 if dc < 8 else 1
        sa, sb = (20, 24) if ph == 0 else (22, 26)
        for k in range(2):
            a(f's_add_u32 m0, s28, {st + k*8192}')
            a('s_nop 0')
            a(f'global_load_lds_dwordx4 v{V_OFFA[ph]}, s[{sa}:{sa+1}]')
            a(f's_add_u32 s{sa}, s{sa}, 64')
            a(f's_addc_u32 s{sa+1}, s{sa+1}, 0')
            a(f's_add_u32 m0, s29, {st + k*8192}')
            a('s_nop 0')
            a(f'global_load_lds_dwordx4 v{V_OFFB}, s[{sb}:{sb+1}]')
            a(f's_add_u32 s{sb}, s{sb}, 32768')
            a(f's_addc_u32 s{sb+1}, s{sb+1}, 0')
    def reads(dc):
        s = dc & 1
        stg = dc % NST
        st_set = stg // 3
        st_off = (stg % 3) * STG
        for k in range(2):
            for r in range(2):
                a(f'ds_read_b128 {vr(V_X[s][k][r],4)}, v{V_RDA[st_set]} offset:{st_off + k*8192 + r*1024}')
            for u in range(2):
                for jhi in range(2):
                    a(f'ds_read_b64_tr_b16 {vr(V_W[s][k][u]+2*jhi,2)}, v{V_RDB[u][st_set]} offset:{st_off + k*8192 + jhi*1024}')
    def mfmas(dc):
        s = dc & 1
        p = 0 if dc < 8 else 1
        for k in range(2):
            for u in range(2):
                for r in range(2):
                    acc = vr(V_ACC[p][u][r], 4)
                    cc = '0' if (dc in (0, 8) and k == 0) else acc
                    a(f'v_mfma_f32_16x16x32_bf16 {acc}, {vr(V_W[s][k][u],4)}, {vr(V_X[s][k][r],4)}, {cc}')
    for dc in range(NST):
        dma(dc)
    a(f's_waitcnt vmcnt({4*(NST-1)})')
    a('s_barrier')
    reads(0)
    for dc in range(NDC):
        if dc + 1 < NDC:
            rem = min(dc + NST - 1, NDC - 1) - (dc + 1)
            a(f's_waitcnt vmcnt({rem*4}) lgkmcnt(0)')
            a('s_barrier')
            if dc + NST < NDC:
                dma(dc + NST)
            reads(dc + 1)
        else:
            a('s_waitcnt lgkmcnt(0)')
        mfmas(dc)
    a(f'''
    s_nop 7
    s_nop 7
    v_and_b32 v{t0}, 15, v{L}
    v_lshrrev_b32 v{t1}, 4, v{L}
    v_lshlrev_b32 v{t0}, 10, v{t0}
    v_lshl_add_u32 v{t0}, v{t1}, 3, v{t0}
    s_lshl_b32 s16, s12, 6
    s_and_b32 s17, s14, 1
    s_lshl_b32 s17, s17, 5
    s_add_u32 s16, s16, s17
    s_lshl_b32 s16, s16, 10          ; row0*1024
    s_lshl_b32 s17, s13, 7
    s_add_u32 s16, s16, s17
    s_lshr_b32 s17, s14, 1
    s_lshl_b32 s17, s17, 6
    s_add_u32 s16, s16, s17
    s_add_u32 s30, s10, s16
    s_addc_u32 s31, s11, 0
    s_add_u32 s32, s44, s16
    s_addc_u32 s33, s45, 0
    s_add_u32 s34, s30, 16384
    s_addc_u32 s35, s31, 0
    s_add_u32 s36, s32, 16384
    s_addc_u32 s37, s33, 0
    s_mov_b32 s40, {f2h(-LOG2E)}
    ''')
    XB = 20
    for r in range(2):
        for u in range(2):
            sb = 30 if r == 0 else 34
            a(f'global_load_dwordx2 {vr(XB + 4*r + 2*u, 2)}, v{t0}, s[{sb}:{sb+1}] offset:{32*u}')
    T = 32
    for r in range(2):
        for u in range(2):
            s_ = V_ACC[0][u][r]
            f_ = V_ACC[1][u][r]
            for i in range(4):
                a(f'v_mul_f32 v{T+i}, s40, v{f_+i}')
            for i in range(4):
                a(f'v_exp_f32 v{T+i}, v{T+i}')
            a('s_nop 0')
            for i in range(4):
                a(f'v_add_f32 v{T+i}, 1.0, v{T+i}')
            for i in range(4):
                a(f'v_rcp_f32 v{T+i}, v{T+i}')
            a('s_nop 0')
            for i in range(4):
                a(f'v_mul_f32 v{T+i}, v{T+i}, v{f_+i}')
            for i in range(4):
                a(f'v_mul_f32 v{T+i}, v{T+i}, v{s_+i}')
            if r == 0 and u == 0:
                a('s_waitcnt vmcnt(0)')
            x = XB + 4 * r + 2 * u
            a(f'v_lshlrev_b32 v{T+4}, 16, v{x}')
            a(f'v_and_b32 v{T+5}, 0xffff0000, v{x}')
            a(f'v_lshlrev_b32 v{T+6}, 16, v{x+1}')
            a(f'v_and_b32 v{T+7}, 0xffff0000, v{x+1}')
            for i in range(4):
                a(f'v_add_f32 v{T+i}, v{T+i}, v{T+4+i}')
            T2 = 44 + 4 * r + 2 * u
            a(f'v_cvt_pk_bf16_f32 v{T2}, v{T}, v{T+1}')
            a(f'v_cvt_pk_bf16_f32 v{T2+1}, v{T+2}, v{T+3}')
            sb = 32 if r == 0 else 36
            a(f'global_store_dwordx2 v{t0}, {vr(T2,2)}, s[{sb}:{sb+1}] offset:{32*u}')
    a.label(f'{name}_end')
    a('s_endpgm')
    kernel_desc(a, name, NV, 48)
    return (name, 256, 256, NST * STG)
```

```python
import sys
from asmlib import *
from k0_ln import gen_ln
from k1_gemm1 import gen_gemm1
from k2_attn import gen_attn
from k3_out import gen_out

HEAD = open('recurrent_scan__softmax_full_mha__glu_gated_geglu__prompt.s.ref').read().split('; Override')[0]

def main(out):
    a = Asm()
    ks = [gen_gemm1(a), gen_attn(a), gen_out(a)]
    import os
    if 'twice' in os.environ.get('ABL',''): ks = [ks[0], ks[1], ks[1], ks[2], ks[3]]
    s = HEAD
    for (n, g, b, l) in ks:
        s += f'; @launch kernel={n} grid=({g},1,1) block=({b},1,1) lds={l}\n'
    s += '.amdgcn_target "amdgcn-amd-amdhsa--gfx950"\n'
    s += a.text()
    open(out, 'w').write(s)
main(sys.argv[1] if len(sys.argv) > 1 else 'recurrent_scan__softmax_full_mha__glu_gated_geglu__prompt.s')
```

```python
class Asm:
    def __init__(self):
        self.lines = []
        self.uid = 0
    def __call__(self, s):
        for l in s.strip('\n').split('\n'):
            self.lines.append('  ' + l.strip())
    def label(self, name):
        self.lines.append(name + ':')
    def newlabel(self, p='L'):
        self.uid += 1
        return f'{p}_{self.uid}'
    def raw(self, s):
        self.lines.append(s)
    def text(self):
        return '\n'.join(self.lines) + '\n'

def kernel_head(a, name):
    a.raw('.text')
    a.raw(f'.globl {name}')
    a.raw('.p2align 8')
    a.raw(f'.type {name},@function')
    a.label(name)

def kernel_desc(a, name, vgpr, sgpr=102, accum=None):
    if accum is None:
        accum = (vgpr + 3) // 4 * 4
    a.raw('.section .rodata,"a"')
    a.raw('.p2align 6')
    a.raw(f'.amdhsa_kernel {name}')
    a.raw(f'  .amdhsa_next_free_vgpr {vgpr}')
    a.raw(f'  .amdhsa_next_free_sgpr {sgpr}')
    a.raw(f'  .amdhsa_accum_offset {accum}')
    a.raw('  .amdhsa_group_segment_fixed_size 0')
    a.raw('  .amdhsa_kernarg_size 80')
    a.raw('  .amdhsa_user_sgpr_count 2')
    a.raw('  .amdhsa_user_sgpr_kernarg_segment_ptr 1')
    a.raw('  .amdhsa_system_sgpr_workgroup_id_x 1')
    a.raw('.end_amdhsa_kernel')

def vr(b, n=1):
    return f'v{b}' if n == 1 else f'v[{b}:{b+n-1}]'
def sr(b, n=1):
    return f's{b}' if n == 1 else f's[{b}:{b+n-1}]'

MB = 1 << 20
WS_XN = 0
WS_Q = 2 * MB
WS_K = 4 * MB
WS_V = 6 * MB
WS_H = 8 * MB
WS_O = 16 * MB
WS_F = 18 * MB
WS_WD = 22 * MB
WS_WO = 24 * MB

def rt_start(a):
    a('s_memrealtime s[90:91]')
def rt_end(a, kidx, lab):
    a(f'''
    s_waitcnt vmcnt(0)
    s_memrealtime s[92:93]
    s_waitcnt lgkmcnt(0)
    s_cmp_lg_u32 s14, 0
    s_cbranch_scc1 {lab}
    v_mov_b32 v20, s90
    v_mov_b32 v21, s92
    s_lshl_b32 s94, s2, 3
    s_add_u32 s94, s94, {(40<<20)} + {kidx*4096}
    v_mov_b32 v22, s94
    v_cmp_eq_u32 vcc, 0, v1
    s_and_saveexec_b64 s[96:97], vcc
    s_cbranch_execz {lab}
    global_store_dwordx2 v22, v[20:21], s[4:5]
    {lab}:
    ''')
```

```python
from asmlib import *

def gen_ln(a):
    name = 'ln_kernel'
    kernel_head(a, name)
    a(f'''
    s_cmp_ge_u32 s2, 256
    s_cbranch_scc1 {name}_end
    s_load_dwordx2 s[4:5], s[0:1], 0
    s_load_dwordx2 s[6:7], s[0:1], 72
    v_lshrrev_b32 v1, 6, v0
    v_and_b32 v2, 63, v0
    s_lshl_b32 s3, s2, 3
    v_lshlrev_b32 v1, 1, v1
    v_add_u32 v1, s3, v1
    v_lshlrev_b32 v1, 10, v1
    v_lshlrev_b32 v2, 4, v2
    v_add_u32 v1, v1, v2
    s_waitcnt lgkmcnt(0)
    global_load_dwordx4 v[4:7], v1, s[4:5]
    global_load_dwordx4 v[8:11], v1, s[4:5] offset:1024
    s_mov_b32 s8, 0x3b000000
    s_mov_b32 s9, 0x3727c5ac
    ''')
    a(f'''
    s_load_dwordx2 s[10:11], s[0:1], 48
    s_load_dwordx2 s[12:13], s[0:1], 16
    v_lshrrev_b32 v40, 6, v0
    s_nop 0
    v_readfirstlane_b32 s14, v40
    s_lshl_b32 s15, s2, 2
    s_add_u32 s14, s14, s15          ; gw
    v_and_b32 v41, 31, v0
    v_bfe_u32 v42, v0, 5, 1
    v_lshlrev_b32 v41, 1, v41        ; n*2
    v_lshl_add_u32 v41, v42, 13, v41
    v_add_u32 v43, 4096, v41
    v_and_b32 v42, 63, v0
    v_lshlrev_b32 v42, 4, v42        ; lane*16
    s_waitcnt lgkmcnt(0)
    s_mov_b64 s[24:25], s[6:7]
    s_mov_b64 s[26:27], s[6:7]
    s_mov_b64 s[28:29], s[6:7]
    s_mov_b64 s[20:21], s[10:11]
    ''')
    for j in range(3):
        lab = f'{name}_tr{j}'
        rb = 44 + 8 * j
        a(f'''
        s_add_u32 s16, s14, {1024*j}
        s_cmp_ge_u32 s16, 2304
        s_cbranch_scc1 {lab}_skip
        s_cmp_ge_u32 s16, 1792
        s_cbranch_scc1 {lab}_wo
        s_mul_hi_u32 s17, s16, {(2**32 + 111)//112}
        s_mul_i32 s18, s17, 112
        s_sub_u32 s18, s16, s18          ; ks
        s_lshl_b32 s19, s18, 14          ; ks*16*1024
        s_lshl_b32 s20, s17, 6
        s_add_u32 s19, s19, s20
        s_add_u32 s20, s10, s19
        s_addc_u32 s21, s11, 0
        s_lshl_b32 s19, s16, 10
        s_add_u32 s19, s19, {WS_WD}
        s_branch {lab}_go
        {lab}_wo:
        s_sub_u32 s16, s16, 1792
        s_lshr_b32 s17, s16, 5
        s_and_b32 s18, s16, 31
        s_lshl_b32 s19, s18, 14
        s_lshl_b32 s20, s17, 6
        s_add_u32 s19, s19, s20
        s_add_u32 s20, s12, s19
        s_addc_u32 s21, s13, 0
        s_lshl_b32 s19, s16, 10
        s_add_u32 s19, s19, {WS_WO}
        {lab}_go:
        s_add_u32 s{24+2*j}, s6, s19
        s_addc_u32 s{25+2*j}, s7, 0
        ''')
        for jj in range(8):
            a(f'global_load_ushort v{rb + jj}, v{41 if jj < 4 else 43}, s[20:21] offset:{(jj%4)*1024}')
        a(f'{lab}_skip:')
    a('s_waitcnt vmcnt(0)')
    for j in range(3):
        rb = 44 + 8 * j
        a(f'''
        s_add_u32 s16, s14, {1024*j}
        s_cmp_ge_u32 s16, 2304
        s_cbranch_scc1 {name}_st{j}
        v_lshl_or_b32 v{rb}, v{rb+1}, 16, v{rb}
        v_lshl_or_b32 v{rb+1}, v{rb+3}, 16, v{rb+2}
        v_lshl_or_b32 v{rb+2}, v{rb+5}, 16, v{rb+4}
        v_lshl_or_b32 v{rb+3}, v{rb+7}, 16, v{rb+6}
        global_store_dwordx4 v42, v[{rb}:{rb+3}], s[{24+2*j}:{25+2*j}]
        {name}_st{j}:
        ''')
    for r in range(2):
        for i in range(4):
            a(f'v_lshlrev_b32 v{16+8*r+2*i}, 16, v{4+4*r+i}')
            a(f'v_and_b32 v{17+8*r+2*i}, 0xffff0000, v{4+4*r+i}')
    def reduce2(x0, x1, t0, t1):
        for pat in ['quad_perm:[1,0,3,2]', 'quad_perm:[2,3,0,1]', 'row_half_mirror', 'row_mirror']:
            a('s_nop 1')
            a(f'v_add_f32_dpp v{x0}, v{x0}, v{x0} {pat} row_mask:0xf bank_mask:0xf')
            a(f'v_add_f32_dpp v{x1}, v{x1}, v{x1} {pat} row_mask:0xf bank_mask:0xf')
        for sw in ['v_permlane16_swap_b32', 'v_permlane32_swap_b32']:
            a(f'v_mov_b32 v{t0}, v{x0}')
            a(f'v_mov_b32 v{t1}, v{x1}')
            a('s_nop 1')
            a(f'{sw} v{x0}, v{t0}')
            a(f'{sw} v{x1}, v{t1}')
            a('s_nop 1')
            a(f'v_add_f32 v{x0}, v{x0}, v{t0}')
            a(f'v_add_f32 v{x1}, v{x1}, v{t1}')
    for r in range(2):
        b = 16 + 8 * r
        a(f'v_add_f32 v{32+r}, v{b}, v{b+1}')
        for i in range(2, 8):
            a(f'v_add_f32 v{32+r}, v{32+r}, v{b+i}')
    reduce2(32, 33, 34, 35)
    for r in range(2):
        a(f'v_mul_f32 v{32+r}, s8, v{32+r}')
    for r in range(2):
        b = 16 + 8 * r
        for i in range(8):
            a(f'v_sub_f32 v{b+i}, v{b+i}, v{32+r}')
    for r in range(2):
        b = 16 + 8 * r
        a(f'v_mul_f32 v{36+r}, v{b}, v{b}')
        for i in range(1, 8):
            a(f'v_fmac_f32 v{36+r}, v{b+i}, v{b+i}')
    reduce2(36, 37, 34, 35)
    for r in range(2):
        a(f'v_mov_b32 v{38+r}, s9')
        a(f'v_fmac_f32 v{38+r}, s8, v{36+r}')
    for r in range(2):
        a(f'v_rsq_f32 v{38+r}, v{38+r}')
    a('s_nop 0')
    for r in range(2):
        b = 16 + 8 * r
        for i in range(8):
            a(f'v_mul_f32 v{b+i}, v{b+i}, v{38+r}')
    for r in range(2):
        b = 16 + 8 * r
        for i in range(4):
            a(f'v_cvt_pk_bf16_f32 v{4+4*r+i}, v{b+2*i}, v{b+2*i+1}')
    a('''
    global_store_dwordx4 v1, v[4:7], s[6:7]
    global_store_dwordx4 v1, v[8:11], s[6:7] offset:1024
    ''')
    a.label(f'{name}_end')
    a('s_endpgm')
    kernel_desc(a, name, 72, 32)
    return (name, 256, 256, 0)
```

```python
from asmlib import *
import struct, os
ABL = os.environ.get('ABL', '')
def f2h(x):
    return '0x%08x' % struct.unpack('<I', struct.pack('<f', x))[0]

LOG2E = 1.4426950408889634
A_SLOT = 16384
B_SLOT = 40960
A_BASE = 0
B_BASE = 2 * A_SLOT
LDS_ST = B_BASE + 3 * B_SLOT
LDS_CS = LDS_ST + 1024
LDS_K1 = LDS_CS + 2560

def stamp(a, k):
    if 'stamp' in ABL:
        a(f's_memtime s[{60+2*k}:{61+2*k}]')

def gen_gemm1(a):
    name = 'gemm1_kernel'
    kernel_head(a, name)
    V_LANE = 1
    V_RDA = [2, 3]
    V_RDB = 4
    V_ONE = 8
    V_T = [5, 6, 7, 12, 13, 14, 15]
    V_X = [[16 + 16 * s + 4 * r for r in range(4)] for s in range(2)]
    V_W = [48 + 4 * u for u in range(5)]
    V_CS = [68 + 4 * u for u in range(5)]
    V_ACC = [[88 + 16 * u + 4 * r for r in range(4)] for u in range(5)]
    NV = 168
    V_OFFA = [16, 17, 18, 19]
    V_OFFB = [[20, 21], [22, 23]]
    L = V_LANE
    t0, t1, t2, t3 = V_T[:4]
    a(f'''
    s_cmp_ge_u32 s2, 256
    s_cbranch_scc1 {name}_end
    ''')
    stamp(a, 0)
    if 'rt' in ABL: rt_start(a)
    a(f'''
    s_load_dwordx2 s[4:5], s[0:1], 72
    s_load_dwordx2 s[50:51], s[0:1], 0
    s_load_dwordx2 s[70:71], s[0:1], 64
    s_load_dwordx2 s[6:7], s[0:1], 8
    s_load_dwordx2 s[8:9], s[0:1], 32
    s_load_dwordx2 s[10:11], s[0:1], 40
    v_lshrrev_b32 v{t0}, 6, v0
    v_and_b32 v{L}, 63, v0
    s_and_b32 s3, s2, 7
    v_readfirstlane_b32 s14, v{t0}
    s_lshr_b32 s15, s2, 3
    s_and_b32 s12, s3, 1
    s_lshl_b32 s12, s12, 3
    s_and_b32 s16, s15, 7
    s_add_u32 s12, s12, s16        ; mi
    s_lshr_b32 s13, s3, 1
    s_lshl_b32 s13, s13, 2
    s_lshr_b32 s16, s15, 3
    s_add_u32 s13, s13, s16        ; nj
    s_cmp_ge_u32 s14, 8
    s_cbranch_scc1 {name}_loader
    ''')
    a(f'''
    v_and_b32 v{t0}, 15, v{L}
    v_lshrrev_b32 v{t1}, 1, v{t0}
    v_lshrrev_b32 v{t2}, 4, v{L}
    v_xor_b32 v{t1}, v{t1}, v{t2}
    v_lshlrev_b32 v{t1}, 4, v{t1}
    v_lshl_add_u32 v{t0}, v{t0}, 7, v{t1}
    s_and_b32 s16, s14, 1
    s_lshl_b32 s16, s16, 13
    v_add_u32 v{V_RDA[0]}, s16, v{t0}
    v_xor_b32 v{V_RDA[1]}, 64, v{V_RDA[0]}
    v_lshrrev_b32 v{t0}, 4, v{L}
    v_and_b32 v{t1}, 15, v{L}
    v_lshrrev_b32 v{t2}, 2, v{t1}
    v_lshl_add_u32 v{t3}, v{t0}, 2, v{t2}      ; 4g+r
    v_and_b32 v{t0}, 1, v{t0}
    v_lshrrev_b32 v{t2}, 1, v{t2}
    v_lshl_add_u32 v{t0}, v{t0}, 1, v{t2}      ; 2(g&1)+(r>>1)
    s_lshr_b32 s16, s14, 1
    v_xor_b32 v{t0}, s16, v{t0}
    v_lshlrev_b32 v{t0}, 5, v{t0}
    v_and_b32 v{t1}, 3, v{t1}
    v_lshl_add_u32 v{t0}, v{t1}, 3, v{t0}
    v_lshl_add_u32 v{t0}, v{t3}, 7, v{t0}
    v_add_u32 v{V_RDB}, {B_BASE}, v{t0}
    ''')
    for i in range(4):
        a(f'v_mov_b32 v{V_ONE+i}, 0x3f803f80')
    for lc in range(5):
        for r in range(4):
            for i in range(4):
                a(f'v_mov_b32 v{V_ACC[lc][r]+i}, 0')
    for lc in range(5):
        for i in range(4):
            a(f'v_mov_b32 v{V_CS[lc]+i}, 0')
    a(f'''
    s_mov_b32 s40, 0            ; i
    s_mov_b32 s42, 0
    s_waitcnt lgkmcnt(0)
    s_and_b32 s16, s14, 1
    s_cmp_eq_u32 s16, 1
    s_cbranch_scc1 {name}_wm1
    s_cmp_lt_u32 s13, 8
    s_cbranch_scc1 {name}_vV0
    s_cmp_lt_u32 s13, 14
    s_cbranch_scc1 {name}_vK0
    s_branch {name}_vB0
    {name}_wm1:
    s_cmp_lt_u32 s13, 8
    s_cbranch_scc1 {name}_vV1
    s_cmp_lt_u32 s13, 14
    s_cbranch_scc1 {name}_vK1
    s_branch {name}_vB1
    ''')
    def rdX(ks, r):
        return f'ds_read_b128 {vr(V_X[ks][r],4)}, v{V_RDA[ks]} offset:{r*2048}'
    def rdW(ks, lc):
        return [f'ds_read_b64_tr_b16 {vr(V_W[lc]+2*jhi,2)}, v{V_RDB} offset:{lc*8192 + ks*4096 + jhi*2048}' for jhi in range(2)]
    def phase(ks, var, ones):
        nks = ks ^ 1
        for lc in range(5):
            if lc == 0:
                a('s_waitcnt lgkmcnt(4)')
            elif lc == 3:
                a('s_waitcnt lgkmcnt(11)')
            elif lc == 4:
                a('s_waitcnt lgkmcnt(12)')
            for r in range(4):
                acc = vr(V_ACC[lc][r], 4)
                if var == 'V' and lc == 4:
                    a(f'v_mfma_f32_16x16x32_bf16 {acc}, {vr(V_X[ks][r],4)}, {vr(V_W[lc],4)}, {acc}')
                else:
                    a(f'v_mfma_f32_16x16x32_bf16 {acc}, {vr(V_W[lc],4)}, {vr(V_X[ks][r],4)}, {acc}')
                if r == 1 and lc < 4:
                    a(rdX(nks, lc))
            if ones:
                cs = vr(V_CS[lc], 4)
                a(f'v_mfma_f32_16x16x32_bf16 {cs}, {vr(V_W[lc],4)}, {vr(V_ONE,4)}, {cs}')
            for x_ in rdW(nks, lc): a(x_)
    for var in ['V', 'K', 'B']:
      for wm in range(2):
        a.label(f'{name}_v{var}{wm}')
        stamp(a, 1)
        a('s_barrier')
        for r in range(4): a(rdX(0, r))
        for lc in range(5):
            for x_ in rdW(0, lc): a(x_)
        a.label(f'{name}_loop{var}{wm}')
        phase(0, var, wm == 0)
        a(f'''
        s_add_u32 s44, s42, {B_SLOT}
        s_cmp_eq_u32 s44, {3*B_SLOT}
        s_cselect_b32 s44, 0, s44
        s_sub_u32 s45, s44, s42
        s_mov_b32 s42, s44
        s_waitcnt lgkmcnt(0)
        v_xor_b32 v{V_RDA[0]}, {A_SLOT}, v{V_RDA[0]}
        v_xor_b32 v{V_RDA[1]}, {A_SLOT}, v{V_RDA[1]}
        v_add_u32 v{V_RDB}, s45, v{V_RDB}
        s_barrier
        ''')
        if 'chunkst' in ABL:
            a('s_memtime s[80:81]')
            a('s_waitcnt lgkmcnt(0)')
            a('s_sub_u32 s80, s80, s60')
            a('s_mov_b32 m0, s40')
            a('s_nop 0')
            a('v_writelane_b32 v0, s80, m0')
        phase(1, var, wm == 1)
        a(f'''
        s_add_u32 s40, s40, 1
        s_cmp_lt_u32 s40, 8
        s_cbranch_scc1 {name}_loop{var}{wm}
        s_waitcnt lgkmcnt(0)
        s_branch {name}_epi{var}
        ''')
      if True:
        a.label(f'{name}_epi{var}')
        stamp(a, 2)
        a('s_nop 7')
        a('s_nop 3')
        a(f'''
        s_and_b32 s16, s14, 1
        s_mul_i32 s16, s16, 1280
        s_lshr_b32 s15, s14, 1        ; wc
        s_lshl_b32 s17, s15, 6
        s_add_u32 s16, s16, s17
        s_add_u32 s16, s16, {LDS_CS}
        v_lshrrev_b32 v{t1}, 4, v{L}
        v_lshl_add_u32 v16, v{t1}, 4, s16
        ''')
        for lc in range(5):
            a(f'ds_write_b128 v16, {vr(V_CS[lc],4)} offset:{lc*256}')
        a('s_waitcnt lgkmcnt(0)')
        a('s_barrier')
        a(f'''
        s_and_b32 s30, s14, 1
        s_lshl_b32 s30, s30, 6
        s_lshl_b32 s31, s12, 7
        s_add_u32 s30, s30, s31       ; row0
        v_and_b32 v{t0}, 15, v{L}
        s_mov_b32 s40, {f2h(-2*LOG2E*0.7978845608028654)}
        s_mov_b32 s41, {f2h(-2*LOG2E*0.7978845608028654*0.044715)}
        s_mov_b32 s42, {f2h(0.25*LOG2E)}
        ''')
        vQK, vV, vH, vC = V_T[4], V_T[5], V_T[6], 8
        ct_lcs = [0, 1, 2, 3] if var == 'V' else [0, 1, 2, 3, 4]
        a(f'''
        s_and_b32 s16, s14, 1
        s_lshl_b32 s16, s16, 8
        s_add_u32 s16, s16, {LDS_ST}
        v_lshl_add_u32 v16, v{t0}, 2, s16
        s_lshl_b32 s17, s15, 6
        s_add_u32 s17, s17, {LDS_CS}
        v_lshl_add_u32 v17, v{t1}, 4, s17
        ''')
        for r in range(4):
            a(f'ds_read_b32 v{56+r}, v16 offset:{64*r}')
            a(f'ds_read_b32 v{60+r}, v16 offset:{512+64*r}')
        for lc in ct_lcs:
            a(f'ds_read_b128 {vr(64+4*lc,4)}, v17 offset:{256*lc}')
            a(f'ds_read_b128 {vr(20+4*lc,4)}, v17 offset:{1280+256*lc}')
        if var == 'V':
            a(f'''
            v_lshl_add_u32 v18, v{t1}, 4, s16
            v_lshl_add_u32 v19, v{t0}, 2, s17
            ds_read_b32 v40, v19 offset:1024
            ds_read_b32 v41, v19 offset:{1280+1024}
            ''')
        a('s_waitcnt lgkmcnt(0)')
        for lc in ct_lcs:
            for i in range(4):
                a(f'v_add_f32 v{64+4*lc+i}, v{64+4*lc+i}, v{20+4*lc+i}')
        for lc in ct_lcs:
            for r in range(4):
                for i in range(4):
                    x_ = V_ACC[lc][r] + i
                    a(f'v_fma_f32 v{x_}, v{60+r}, v{64+4*lc+i}, v{x_}')
                for i in range(4):
                    x_ = V_ACC[lc][r] + i
                    a(f'v_mul_f32 v{x_}, v{56+r}, v{x_}')
        if var == 'V':
            a('v_add_f32 v40, v40, v41')
            for r in range(4):
                a(f'ds_read_b128 v[44:47], v18 offset:{64*r}')
                a(f'ds_read_b128 v[48:51], v18 offset:{512+64*r}')
                a('s_waitcnt lgkmcnt(0)')
                for i in range(4):
                    x_ = V_ACC[4][r] + i
                    a(f'v_fma_f32 v{x_}, v{48+i}, v40, v{x_}')
                for i in range(4):
                    x_ = V_ACC[4][r] + i
                    a(f'v_mul_f32 v{x_}, v{44+i}, v{x_}')
        lane_qk = f'''
            v_lshlrev_b32 v{vQK}, 4, v{t0}
            v_lshrrev_b32 v{t2}, 1, v{t1}
            v_lshl_add_u32 v{vQK}, v{t2}, 9, v{vQK}
            v_and_b32 v{t3}, 1, v{t1}
            v_lshl_add_u32 v{vQK}, v{t3}, 3, v{vQK}
            v_lshlrev_b32 v{vV}, 4, v{t0}
            v_lshl_add_u32 v{vV}, v{t3}, 8, v{vV}
            v_lshl_add_u32 v{vV}, v{t2}, 3, v{vV}
            s_lshl_b32 s34, s30, 5         ; row0*32
            '''
        def store_qkv(lc, ty, T):
            for r in range(4):
                acc = V_ACC[lc][r]
                if ty == 'q':
                    for i in range(4):
                        a(f'v_mul_f32 v{acc+i}, s42, v{acc+i}')
                T2 = T + 2 * r
                a(f'v_cvt_pk_bf16_f32 v{T2}, v{acc}, v{acc+1}')
                a(f'v_cvt_pk_bf16_f32 v{T2+1}, v{acc+2}, v{acc+3}')
                if ty == 'v':
                    a(f'global_store_dwordx2 v{vV}, {vr(T2,2)}, s[36:37] offset:{512*r}')
                else:
                    a(f'global_store_dwordx2 v{vQK}, {vr(T2,2)}, s[36:37] offset:{(r>>1)*1024 + (r&1)*256}')
        if var in 'VK':
            a(lane_qk)
            if var == 'V':
                a(f's_lshl_b32 s35, s13, 2')
                wsoff = WS_V
            else:
                a(f's_sub_u32 s35, s13, 8')
                a(f's_lshl_b32 s35, s35, 2')
                wsoff = WS_K
            a(f'''
            s_add_u32 s35, s35, s15
            s_lshl_b32 s35, s35, 16
            s_add_u32 s35, s35, s34
            s_add_u32 s35, s35, {wsoff}
            s_add_u32 s36, s4, s35
            s_addc_u32 s37, s5, 0
            ''')
            store_qkv(4, var.lower(), 40)
            a(f'''
            s_lshr_b32 s32, s30, 5
            s_mul_i32 s32, s32, 112
            s_lshl_b32 s33, s13, 3
            s_add_u32 s32, s32, s33
            s_add_u32 s32, s32, s15
            s_lshl_b32 s32, s32, 10
            s_add_u32 s32, s32, {WS_H}
            s_add_u32 s32, s4, s32
            s_addc_u32 s33, s5, 0
            v_mov_b32 v{vC}, s40
            v_add_u32 v{vH}, 4096, v{vQK}
            ''')
            T = 16
            for r in range(4):
                for j in range(2):
                    g = V_ACC[j][r]
                    u = V_ACC[2 + j][r]
                    for i in range(4):
                        a(f'v_mul_f32 v{T+i}, v{g+i}, v{g+i}')
                    for i in range(4):
                        a(f'v_fma_f32 v{T+i}, v{T+i}, s41, v{vC}')
                    for i in range(4):
                        a(f'v_mul_f32 v{T+i}, v{T+i}, v{g+i}')
                    for i in range(4):
                        a(f'v_exp_f32 v{T+i}, v{T+i}')
                    for i in range(4):
                        a(f'v_mul_f32 v{T+4+i}, v{g+i}, v{u+i}')
                    for i in range(4):
                        a(f'v_add_f32 v{T+i}, 1.0, v{T+i}')
                    for i in range(4):
                        a(f'v_rcp_f32 v{T+i}, v{T+i}')
                    a('s_nop 0')
                    for i in range(4):
                        a(f'v_mul_f32 v{T+i}, v{T+i}, v{T+4+i}')
                    T2 = T + 8 + 2 * j + 4 * (r & 1)
                    a(f'v_cvt_pk_bf16_f32 v{T2}, v{T}, v{T+1}')
                    a(f'v_cvt_pk_bf16_f32 v{T2+1}, v{T+2}, v{T+3}')
                    a(f'global_store_dwordx2 v{vH if j else vQK}, {vr(T2,2)}, s[32:33] offset:{256*(r&1)}')
                if r == 1:
                    a('s_add_u32 s32, s32, 114688')
                    a('s_addc_u32 s33, s33, 0')
        else:
            a(lane_qk)
            a(f'''
            s_sub_u32 s35, s13, 8
            s_lshl_b32 s35, s35, 2
            s_add_u32 s35, s35, s15
            s_lshl_b32 s35, s35, 16
            s_add_u32 s35, s35, s34
            s_add_u32 s35, s35, {WS_K}
            s_add_u32 s36, s4, s35
            s_addc_u32 s37, s5, 0
            ''')
            store_qkv(0, 'k', 40)
            for j in range(1, 5):
                a(f'''
                s_sub_u32 s35, s13, 14
                s_lshl_b32 s35, s35, 4
                s_add_u32 s35, s35, s15
                s_add_u32 s35, s35, {4*(j-1)}
                s_lshl_b32 s35, s35, 16
                s_add_u32 s35, s35, s34
                s_add_u32 s35, s35, {WS_Q}
                s_add_u32 s36, s4, s35
                s_addc_u32 s37, s5, 0
                ''')
                store_qkv(j, 'q', 40 + 8 * (j & 1))
        if 'stamp' in ABL:
            a(f'''
            s_waitcnt vmcnt(0)
            s_memtime s[66:67]
            s_waitcnt lgkmcnt(0)
            s_sub_u32 s62, s62, s60
            s_sub_u32 s64, s64, s60
            s_sub_u32 s66, s66, s60
            v_mov_b32 v20, s62
            v_mov_b32 v21, s64
            v_mov_b32 v22, s66
            v_mov_b32 v23, s2
            s_lshl_b32 s68, s14, 4
            v_mov_b32 v24, s68
            s_cmp_lg_u32 s2, 77
            s_cbranch_scc1 {name}_end
            v_cmp_eq_u32 vcc, 0, v1
            s_and_saveexec_b64 s[68:69], vcc
            s_cbranch_execz {name}_end
            global_store_dwordx4 v24, v[20:23], s[70:71]
            s_mov_b64 exec, s[68:69]
            s_cmp_lg_u32 s14, 0
            s_cbranch_scc1 {name}_end
            v_lshlrev_b32 v24, 2, v1
            v_cmp_gt_u32 vcc, 8, v1
            s_and_saveexec_b64 s[68:69], vcc
            global_store_dword v24, v0, s[70:71] offset:128
            ''')
        if 'rt' in ABL: rt_end(a, 1, a.newlabel('rt'))
        a('s_endpgm')

    a.label(f'{name}_loader')
    a(f'''
    s_sub_u32 s14, s14, 8            ; lw
    s_and_b32 s16, s14, 1
    s_lshl_b32 s16, s16, 2
    v_lshrrev_b32 v{t0}, 4, v{L}
    v_add_u32 v{t0}, s16, v{t0}
    v_and_b32 v{t1}, 7, v{L}
    v_xor_b32 v{t0}, v{t0}, v{t1}
    v_lshlrev_b32 v{t0}, 4, v{t0}
    v_lshrrev_b32 v{t1}, 3, v{L}
    v_lshl_add_u32 v{V_OFFA[0]}, v{t1}, 10, v{t0}
    v_add_u32 v{V_OFFA[1]}, 0x8000, v{V_OFFA[0]}
    v_add_u32 v{V_OFFA[2]}, 0x10000, v{V_OFFA[0]}
    v_add_u32 v{V_OFFA[3]}, 0x18000, v{V_OFFA[0]}
    v_lshrrev_b32 v{t0}, 3, v{L}
    v_and_b32 v{t0}, 3, v{t0}
    v_lshrrev_b32 v{t1}, 5, v{L}
    v_lshl_add_u32 v{t0}, v{t1}, 3, v{t0}
    v_lshrrev_b32 v{t1}, 1, v{L}
    v_lshrrev_b32 v{t2}, 4, v{L}
    v_xor_b32 v{t1}, v{t1}, v{t2}
    v_and_b32 v{t1}, 3, v{t1}
    v_lshlrev_b32 v{t1}, 5, v{t1}
    v_and_b32 v{t2}, 1, v{L}
    v_lshl_add_u32 v{t1}, v{t2}, 4, v{t1}
    v_mul_u32_u24 v{t2}, 3072, v{t0}
    v_add_u32 v{V_OFFB[0][0]}, v{t2}, v{t1}
    v_add_u32 v{V_OFFB[0][1]}, {32*3072}, v{V_OFFB[0][0]}
    v_mul_u32_u24 v{t2}, 3584, v{t0}
    v_add_u32 v{V_OFFB[1][0]}, v{t2}, v{t1}
    v_add_u32 v{V_OFFB[1][1]}, {32*3584}, v{V_OFFB[1][0]}
    s_waitcnt lgkmcnt(0)
    s_lshl_b32 s16, s12, 17
    s_lshl_b32 s17, s14, 13
    s_add_u32 s16, s16, s17
    s_add_u32 s16, s50, s16
    s_addc_u32 s17, s51, 0
    s_lshl_b32 s30, s14, 10          ; lw*1024
    s_lshr_b32 s32, s14, 1
    s_lshl_b32 s31, s32, 2
    s_and_b32 s32, s14, 1
    s_lshl_b32 s32, s32, 4
    s_add_u32 s31, s31, s32
    s_mul_i32 s32, s31, 3072
    s_mul_i32 s33, s31, 3584
    s_mov_b32 s46, {64*3584}
    s_cmp_ge_u32 s13, 14
    s_cbranch_scc1 {name}_srcB
    s_lshl_b32 s34, s13, 8           ; 2nj*128
    s_add_u32 s34, s34, s33
    s_add_u32 s18, s8, s34
    s_addc_u32 s19, s9, 0
    s_add_u32 s20, s18, 128
    s_addc_u32 s21, s19, 0
    s_add_u32 s22, s10, s34
    s_addc_u32 s23, s11, 0
    s_add_u32 s24, s22, 128
    s_addc_u32 s25, s23, 0
    s_lshl_b32 s34, s13, 7
    s_add_u32 s35, s34, 2048
    s_cmp_lt_u32 s13, 8
    s_cselect_b32 s34, s35, s34
    s_add_u32 s34, s34, s32
    s_add_u32 s26, s6, s34
    s_addc_u32 s27, s7, 0
    s_branch {name}_srcdone
    {name}_srcB:
    s_lshl_b32 s34, s13, 7
    s_add_u32 s34, s34, s32
    s_add_u32 s18, s6, s34
    s_addc_u32 s19, s7, 0
    s_sub_u32 s34, s13, 14
    s_lshl_b32 s34, s34, 9
    s_add_u32 s34, s34, s32
    s_add_u32 s20, s6, s34
    s_addc_u32 s21, s7, 0
    s_add_u32 s22, s20, 128
    s_addc_u32 s23, s21, 0
    s_add_u32 s24, s20, 256
    s_addc_u32 s25, s21, 0
    s_add_u32 s26, s20, 384
    s_addc_u32 s27, s21, 0
    s_mov_b32 s46, {64*3072}
    v_mov_b32 v{V_OFFB[1][0]}, v{V_OFFB[0][0]}
    v_mov_b32 v{V_OFFB[1][1]}, v{V_OFFB[0][1]}
    {name}_srcdone:
    ''')
    def dmaA(slot):
        for m in range(4):
            a(f's_add_u32 m0, {slot}, {A_BASE + m*4096}')
            a('s_nop 0')
            a(f'global_load_lds_dwordx4 v{V_OFFA[m]}, s[16:17]')
        a('s_add_u32 s16, s16, 128')
        a('s_addc_u32 s17, s17, 0')
    def dmaB(slot):
        for lc in range(5):
            sb = 18 + 2 * lc
            rs = 1 if lc < 4 else 0
            for eh in range(2):
                a(f's_add_u32 m0, {slot}, {B_BASE + lc*8192 + eh*4096}')
                a('s_nop 0')
                a(f'global_load_lds_dwordx4 v{V_OFFB[rs][eh]}, s[{sb}:{sb+1}]')
            if lc < 4:
                a(f's_add_u32 s{sb}, s{sb}, s46')
            else:
                a(f's_add_u32 s{sb}, s{sb}, {64*3072}')
            a(f's_addc_u32 s{sb+1}, s{sb+1}, 0')
    a(f's_add_u32 s47, s30, {A_SLOT}')
    a(f's_add_u32 s48, s30, {B_SLOT}')
    a(f's_add_u32 s49, s30, {2*B_SLOT}')
    a(f'''
    v_lshrrev_b32 v24, 2, v{L}
    v_and_b32 v25, 3, v{L}
    v_lshlrev_b32 v25, 4, v25
    v_lshl_add_u32 v24, v24, 10, v25
    s_lshl_b32 s52, s12, 17
    s_lshl_b32 s53, s14, 15
    s_add_u32 s52, s52, s53
    s_add_u32 s52, s50, s52
    s_addc_u32 s53, s51, 0
    s_add_u32 s54, s52, 16384
    s_addc_u32 s55, s53, 0
    s_load_dwordx2 s[56:57], s[0:1], 48
    s_load_dwordx2 s[58:59], s[0:1], 16
    ''')
    dmaA('s30'); dmaB('s30'); dmaA('s47'); dmaB('s48'); dmaB('s49')
    a(f'''
    v_and_b32 v26, 31, v{L}
    v_lshrrev_b32 v27, 5, v{L}
    v_lshlrev_b32 v26, 1, v26
    v_lshl_add_u32 v26, v27, 13, v26      ; n*2 + hh*8192
    v_add_u32 v27, 4096, v26
    v_lshlrev_b32 v28, 4, v{L}            ; lane*16
    s_lshl_b32 s72, s2, 2
    s_add_u32 s72, s72, s14
    s_waitcnt lgkmcnt(0)
    s_mov_b64 s[74:75], s[4:5]
    s_mov_b64 s[76:77], s[4:5]
    s_mov_b64 s[78:79], s[4:5]
    s_mov_b64 s[80:81], s[56:57]
    s_waitcnt vmcnt(24)
    s_barrier
    ''')
    def stats_process(hs):
        for h in hs:
            a('v_mov_b32 v8, 0\nv_mov_b32 v9, 0\nv_mov_b32 v10, 0\nv_mov_b32 v11, 0')
            for j_ in range(16):
                for i_ in range(4):
                    x = XS + 64 * h + 4 * j_ + i_
                    tt = 12 if (i_ & 1) == 0 else 14
                    a(f'v_lshlrev_b32 v{tt}, 16, v{x}')
                    a(f'v_and_b32 v{tt+1}, 0xffff0000, v{x}')
                    a(f'v_pk_add_f32 v[8:9], v[8:9], v[{tt}:{tt+1}]')
                    a(f'v_pk_fma_f32 v[10:11], v[{tt}:{tt+1}], v[{tt}:{tt+1}], v[10:11]')
            a(f'''
            v_add_f32 v8, v8, v9
            v_add_f32 v10, v10, v11
            s_nop 1
            v_add_f32_dpp v8, v8, v8 quad_perm:[1,0,3,2] row_mask:0xf bank_mask:0xf
            v_add_f32_dpp v10, v10, v10 quad_perm:[1,0,3,2] row_mask:0xf bank_mask:0xf
            s_nop 1
            v_add_f32_dpp v8, v8, v8 quad_perm:[2,3,0,1] row_mask:0xf bank_mask:0xf
            v_add_f32_dpp v10, v10, v10 quad_perm:[2,3,0,1] row_mask:0xf bank_mask:0xf
            s_mov_b32 s82, 0x3b000000
            s_mov_b32 s83, 0x3727c5ac
            v_mov_b32 v2, s83
            v_mul_f32 v8, s82, v8
            v_fma_f32 v10, v10, s82, v2
            v_fma_f32 v10, -v8, v8, v10
            v_max_f32 v10, v10, v2
            v_rsq_f32 v10, v10
            v_sub_f32 v8, 0, v8
            v_lshrrev_b32 v3, 2, v{L}
            v_lshlrev_b32 v3, 2, v3
            s_lshl_b32 s82, s14, 7
            s_add_u32 s82, s82, {LDS_ST + 64*h}
            v_add_u32 v3, s82, v3
            ds_write_b32 v3, v10
            ds_write_b32 v3, v8 offset:512
            ''')
    def tr_issue():
        for j_ in range(3):
            lab = f'{name}_tr{j_}'
            rb = 32 + 8 * j_
            a(f'''
            s_add_u32 s82, s72, {1024*j_}
            s_min_u32 s82, s82, 2303
            s_cmp_ge_u32 s82, 1792
            s_cbranch_scc1 {lab}_wo
            s_mul_hi_u32 s83, s82, {(2**32 + 111)//112}
            s_mul_i32 s84, s83, 112
            s_sub_u32 s84, s82, s84
            s_lshl_b32 s85, s84, 14
            s_lshl_b32 s86, s83, 6
            s_add_u32 s85, s85, s86
            s_add_u32 s80, s56, s85
            s_addc_u32 s81, s57, 0
            s_lshl_b32 s85, s82, 10
            s_add_u32 s85, s85, {WS_WD}
            s_branch {lab}_go
            {lab}_wo:
            s_sub_u32 s82, s82, 1792
            s_lshr_b32 s83, s82, 5
            s_and_b32 s84, s82, 31
            s_lshl_b32 s85, s84, 14
            s_lshl_b32 s86, s83, 6
            s_add_u32 s85, s85, s86
            s_add_u32 s80, s58, s85
            s_addc_u32 s81, s59, 0
            s_lshl_b32 s85, s82, 10
            s_add_u32 s85, s85, {WS_WO}
            {lab}_go:
            s_add_u32 s{74+2*j_}, s4, s85
            s_addc_u32 s{75+2*j_}, s5, 0
            ''')
            for jj in range(8):
                a(f'global_load_ushort v{rb + jj}, v{26 if jj < 4 else 27}, s[80:81] offset:{(jj%4)*1024}')
    def tr_store():
        for j_ in range(3):
            rb = 32 + 8 * j_
            a(f'''
            v_lshl_or_b32 v{rb}, v{rb+1}, 16, v{rb}
            v_lshl_or_b32 v{rb+1}, v{rb+3}, 16, v{rb+2}
            v_lshl_or_b32 v{rb+2}, v{rb+5}, 16, v{rb+4}
            v_lshl_or_b32 v{rb+3}, v{rb+7}, 16, v{rb+6}
            global_store_dwordx4 v28, v[{rb}:{rb+3}], s[{74+2*j_}:{75+2*j_}]
            ''')
    a(f'''
    v_and_b32 v2, 15, v{L}
    v_lshrrev_b32 v3, 1, v2
    v_lshrrev_b32 v4, 4, v{L}
    v_xor_b32 v3, v3, v4
    v_lshlrev_b32 v3, 4, v3
    v_lshl_add_u32 v2, v2, 7, v3
    s_lshl_b32 s82, s14, 12
    v_add_u32 v60, s82, v2
    v_xor_b32 v61, 64, v60
    ''')
    for i_ in range(4):
        a(f'v_mov_b32 v{96+i_}, 0x3f803f80')
    for i_ in range(16):
        a(f'v_mov_b32 v{80+i_}, 0')
    def stats(slot):
        for s_ in range(2):
            for ks in range(2):
                a(f'ds_read_b128 {vr(64+8*s_+4*ks,4)}, v{60+ks} offset:{A_BASE + slot*A_SLOT + s_*2048}')
        a('s_waitcnt lgkmcnt(0)')
        for ks in range(2):
            for s_ in range(2):
                x = vr(64 + 8 * s_ + 4 * ks, 4)
                a(f'v_mfma_f32_16x16x32_bf16 {vr(80+4*s_,4)}, {x}, v[96:99], {vr(80+4*s_,4)}')
                a(f'v_mfma_f32_16x16x32_bf16 {vr(88+4*s_,4)}, {x}, {x}, {vr(88+4*s_,4)}')
    stats(0)
    N = [10, 10, 34, 10, 13, 10, 0, 0]
    for it in range(8):
        a(f's_waitcnt vmcnt({N[it]})')
        a('s_barrier')
        if it <= 5:
            a(f's_add_u32 s45, s30, {(it % 2) * A_SLOT}')
            dmaA('s45')
        if it <= 4:
            a(f's_add_u32 s45, s30, {(it % 3) * B_SLOT}')
            dmaB('s45')
        if it < 7:
            stats((it + 1) % 2)
        if it == 1:
            tr_issue()
        if it == 3:
            tr_store()
    a(f'''
    v_and_b32 v24, 3, v{L}
    v_and_b32 v25, 15, v{L}
    v_lshrrev_b32 v26, 2, v25
    v_lshrrev_b32 v27, 4, v{L}
    s_mov_b32 s84, 0x3b000000
    s_mov_b32 s85, 0x3727c5ac
    v_mov_b32 v28, s85
    v_lshlrev_b32 v25, 2, v25
    s_lshl_b32 s82, s14, 7
    s_add_u32 s82, s82, {LDS_ST}
    v_add_u32 v25, s82, v25
    s_nop 7
    ''')
    for s_ in range(2):
        d1, d2 = 80 + 4 * s_, 88 + 4 * s_
        for i_ in range(1, 4):
            a(f'v_cmp_eq_u32 vcc, {i_}, v24')
            a(f'v_cndmask_b32 v{d1}, v{d1}, v{d1+i_}, vcc')
            a(f'v_cndmask_b32 v{d2}, v{d2}, v{d2+i_}, vcc')
        a(f'''
        v_mul_f32 v{d1}, s84, v{d1}
        v_fma_f32 v{d2}, v{d2}, s84, v28
        v_fma_f32 v{d2}, -v{d1}, v{d1}, v{d2}
        v_max_f32 v{d2}, v{d2}, v28
        v_rsq_f32 v{d2}, v{d2}
        v_sub_f32 v{d1}, 0, v{d1}
        ''')
    a(f'''
    v_cmp_eq_u32 vcc, v26, v27
    s_and_saveexec_b64 s[86:87], vcc
    ds_write_b32 v25, v88
    ds_write_b32 v25, v80 offset:512
    ds_write_b32 v25, v92 offset:64
    ds_write_b32 v25, v84 offset:576
    s_mov_b64 exec, s[86:87]
    s_waitcnt lgkmcnt(0)
    s_barrier
    ''')
    a.label(f'{name}_end')
    a('s_endpgm')
    kernel_desc(a, name, NV, 102)
    return (name, 256, 768, LDS_K1)
```

```python
from asmlib import *
from k1_gemm1 import f2h, ABL, stamp
import os
SWITCH = int(os.environ.get('SWITCH', '16'))

def gen_attn(a):
    name = 'attn_kernel'
    kernel_head(a, name)
    V_LANE = 1
    V_KA = 2
    V_VA = 3
    V_Q = 4
    V_KF = [8, 12]
    V_VF = [[16, 20], [24, 28]]
    V_S = [32, 48]
    V_P = 64
    V_O = 72
    V_NM = 88
    V_T = [104, 105, 106, 107, 108, 109]
    NV = 112
    L = V_LANE
    t0, t1, t2, t3 = V_T[:4]
    a(f'''
    s_cmp_ge_u32 s2, 256
    s_cbranch_scc1 {name}_end
    s_memtime s[60:61]
    s_memrealtime s[90:91]
    s_load_dwordx2 s[4:5], s[0:1], 72
    s_load_dwordx2 s[70:71], s[0:1], 64
    v_lshrrev_b32 v{t0}, 6, v0
    v_and_b32 v{L}, 63, v0
    s_and_b32 s3, s2, 7
    v_readfirstlane_b32 s14, v{t0}
    s_lshr_b32 s15, s2, 3
    s_cmp_ge_u32 s14, 8
    s_cbranch_scc1 {name}_gemm
    s_setprio 1
    s_and_b32 s12, s15, 3
    s_lshl_b32 s3, s3, 2
    s_add_u32 s12, s12, s3       ; head
    s_lshr_b32 s13, s2, 5        ; qblock
    s_lshl_b32 s13, s13, 3
    s_add_u32 s13, s13, s14      ; qtile
    v_lshlrev_b32 v{V_KA}, 4, v{L}
    s_lshl_b32 s16, s12, 16      ; head*65536
    s_lshl_b32 s17, s13, 10      ; qtile*1024
    s_lshl_b32 s18, s14, 10      ; w*1024
    s_waitcnt lgkmcnt(0)
    s_add_u32 s20, s4, s16
    s_addc_u32 s21, s5, 0
    s_add_u32 s22, s20, s17
    s_addc_u32 s23, s21, 0
    s_add_u32 s22, s22, {WS_Q}
    s_addc_u32 s23, s23, 0
    global_load_dwordx4 {vr(V_Q,4)}, v{V_KA}, s[22:23]
    s_add_u32 s24, s20, s18
    s_addc_u32 s25, s21, 0
    s_add_u32 s26, s24, {WS_V}
    s_addc_u32 s27, s25, 0
    s_add_u32 s24, s24, {WS_K}
    s_addc_u32 s25, s25, 0
    ''')
    for c in range(8):
        a(f'''
        s_add_u32 m0, s18, {c*8192}
        s_nop 0
        global_load_lds_dwordx4 v{V_KA}, s[24:25]
        s_add_u32 m0, s18, {65536 + c*8192}
        s_nop 0
        global_load_lds_dwordx4 v{V_KA}, s[26:27]
        ''')
        if c < 7:
            a('''
            s_add_u32 s24, s24, 8192
            s_addc_u32 s25, s25, 0
            s_add_u32 s26, s26, 8192
            s_addc_u32 s27, s27, 0
            ''')
    a(f'''
    v_lshrrev_b32 v{t0}, 5, v{L}
    v_and_b32 v{t1}, 15, v{L}
    v_lshlrev_b32 v{t1}, 4, v{t1}
    v_lshl_add_u32 v{V_VA}, v{t0}, 8, v{t1}
    v_add_u32 v{V_VA}, 0x10000, v{V_VA}
    s_mov_b32 s28, 0x0000ffff
    s_mov_b32 s29, 0x0000ffff
    ''')
    for s in range(2):
        for h in range(2):
            for i in range(4):
                a(f'v_mov_b32 v{V_VF[s][h]+i}, 0x3f803f80')
    for i in range(16):
        a(f'v_mov_b32 v{V_O+i}, 0')
    def rdK(t, koff):
        a(f'ds_read_b128 {vr(V_KF[t&1],4)}, v{V_KA} offset:{koff}')
    def rdV(t, voff):
        a('s_mov_b64 exec, s[28:29]')
        a(f'ds_read_b128 {vr(V_VF[t&1][0],4)}, v{V_VA} offset:{voff}')
        a(f'ds_read_b128 {vr(V_VF[t&1][1],4)}, v{V_VA} offset:{voff+512}')
        a('s_mov_b64 exec, -1')
    def qk(t, c=None):
        cc = vr(V_NM, 16) if c is None else c
        a(f'v_mfma_f32_32x32x16_bf16 {vr(V_S[t&1],16)}, {vr(V_KF[t&1],4)}, {vr(V_Q,4)}, {cc}')
    a('s_waitcnt vmcnt(12)')
    a('s_barrier')
    stamp(a, 1)
    rdK(0, 0)
    rdK(1, 1024)
    rdV(0, 0)
    a('s_waitcnt lgkmcnt(3)')
    qk(0, '0')
    a('s_nop 15')
    S = V_S[0]
    a(f'v_max3_f32 v{t0}, v{S}, v{S+1}, v{S+2}')
    for i in range(3, 15, 2):
        a(f'v_max3_f32 v{t0}, v{t0}, v{S+i}, v{S+i+1}')
    a(f'v_max_f32 v{t0}, v{t0}, v{S+15}')
    a(f'''
    v_mov_b32 v{t1}, v{t0}
    s_nop 1
    v_permlane32_swap_b32 v{t0}, v{t1}
    s_nop 1
    v_max_f32 v{t0}, v{t0}, v{t1}
    v_add_f32 v{t0}, 0x42700000, v{t0}
    v_sub_f32 v{t0}, 0, v{t0}
    ''')
    for i in range(16):
        a(f'v_mov_b32 v{V_NM+i}, v{t0}')
    a('s_nop 1')
    qk(0)
    a('s_nop 15')

    def tile(t, koff2, voff1):
        S = V_S[t & 1]
        for i in range(4):
            a(f'v_exp_f32 v{S+i}, v{S+i}')
        a('s_waitcnt lgkmcnt(2)')
        qk(t + 1)
        for i in range(4, 8):
            a(f'v_exp_f32 v{S+i}, v{S+i}')
        rdK(t + 2, koff2)
        for i in range(4):
            a(f'v_cvt_pk_bf16_f32 v{V_P+i}, v{S+2*i}, v{S+2*i+1}')
        a('s_waitcnt lgkmcnt(1)')
        a(f'v_mfma_f32_32x32x16_bf16 {vr(V_O,16)}, {vr(V_VF[t&1][0],4)}, {vr(V_P,4)}, {vr(V_O,16)}')
        for i in range(8, 16):
            a(f'v_exp_f32 v{S+i}, v{S+i}')
        rdV(t + 1, voff1)
        for i in range(4, 8):
            a(f'v_cvt_pk_bf16_f32 v{V_P+i}, v{S+2*i}, v{S+2*i+1}')
        a('s_nop 1')
        a(f'v_mfma_f32_32x32x16_bf16 {vr(V_O,16)}, {vr(V_VF[t&1][1],4)}, {vr(V_P+4,4)}, {vr(V_O,16)}')

    for t in range(16):
        if t == 14:
            a('s_waitcnt vmcnt(0)')
            a('s_barrier')
        tile(t, (t + 2) * 1024, (t + 1) * 1024)
    a(f'''
    v_add_u32 v{V_KA}, 16384, v{V_KA}
    v_add_u32 v{V_VA}, 16384, v{V_VA}
    s_mov_b32 s30, 6
    ''')
    if SWITCH == 16:
        a(f'''
        s_cmp_lt_u32 s14, 4
        s_cbranch_scc1 {name}_loop
        s_setprio 2
        ''')
    stamp(a, 2)
    a.label(f'{name}_loop')
    for t in range(8):
        tile(t, (t + 2) * 1024, (t + 1) * 1024)
        if SWITCH > 16 and (SWITCH - 16 - 1) % 8 == t:
            it = 6 - (SWITCH - 16 - 1) // 8
            a(f'''
            s_cmp_lg_u32 s30, {it}
            s_cbranch_scc1 {name}_nosw
            s_cmp_lt_u32 s14, 4
            s_cbranch_scc1 {name}_nosw
            s_setprio 2
            {name}_nosw:
            ''')
    a(f'''
    v_add_u32 v{V_KA}, 8192, v{V_KA}
    v_add_u32 v{V_VA}, 8192, v{V_VA}
    s_sub_u32 s30, s30, 1
    ''')
    a(f'''
    s_cmp_lg_u32 s30, 0
    s_cbranch_scc1 {name}_loop
    s_nop 15
    s_waitcnt lgkmcnt(0)
    ''')
    stamp(a, 3)
    a(f'''
    v_rcp_f32 v{t0}, v{V_O+8}
    v_and_b32 v{t1}, 31, v{L}
    v_lshrrev_b32 v{t2}, 5, v{L}
    v_lshlrev_b32 v{t1}, 4, v{t1}
    v_lshl_add_u32 v{t1}, v{t2}, 3, v{t1}
    s_lshl_b32 s16, s13, 5
    s_add_u32 s16, s16, s12
    s_lshl_b32 s16, s16, 10
    s_add_u32 s16, s16, {WS_O}
    s_add_u32 s16, s4, s16
    s_addc_u32 s17, s5, 0
    ''')
    for i in range(8):
        a(f'v_mul_f32 v{V_O+i}, v{V_O+i}, v{t0}')
    for i in range(4):
        a(f'v_cvt_pk_bf16_f32 v{V_P+i}, v{V_O+2*i}, v{V_O+2*i+1}')
    a(f'''
    global_store_dwordx2 v{t1}, {vr(V_P,2)}, s[16:17]
    global_store_dwordx2 v{t1}, {vr(V_P+2,2)}, s[16:17] offset:512
    ''')
    if 'stamp' in ABL:
        a(f'''
        s_waitcnt vmcnt(0)
        s_memtime s[68:69]
        s_waitcnt lgkmcnt(0)
        s_sub_u32 s62, s62, s60
        s_sub_u32 s64, s64, s60
        s_sub_u32 s66, s66, s60
        s_sub_u32 s68, s68, s60
        v_mov_b32 v20, s62
        v_mov_b32 v21, s64
        v_mov_b32 v22, s66
        v_mov_b32 v23, s68
        s_lshl_b32 s72, s14, 4
        v_mov_b32 v24, s72
        s_cmp_lg_u32 s2, 77
        s_cbranch_scc1 {name}_end
        v_cmp_eq_u32 vcc, 0, v1
        s_and_saveexec_b64 s[72:73], vcc
        s_cbranch_execz {name}_end
        global_store_dwordx4 v24, v[20:23], s[70:71]
        ''')
    if 'rt' in ABL: rt_end(a, 2, a.newlabel('rt'))
    a('s_endpgm')
    gen_gemm_waves(a, name)
    a.label(f'{name}_end')
    a('s_endpgm')
    kernel_desc(a, name, 168, 102)
    return (name, 256, 768, 131072 + 16384 + 64)

def gen_gemm_waves(a, name):
    L = 1
    VA = 2
    VX = 3
    T = [4, 5, 6, 7]
    R = [[[8 + 16 * s + 8 * o + 4 * j for j in range(2)] for o in range(2)] for s in range(4)]
    ACC = [[72 + 32 * ns + 16 * ts for ts in range(2)] for ns in range(2)]
    TMP = 136
    XB = 131072
    CNT = XB + 16384
    a.label(f'{name}_gemm')
    a(f'''
    s_setprio 3
    s_sub_u32 s14, s14, 8            ; gw
    s_and_b32 s12, s15, 3
    s_lshl_b32 s3, s3, 2
    s_add_u32 s12, s12, s3           ; mi
    s_lshr_b32 s13, s15, 2           ; nj
    v_lshlrev_b32 v{VA}, 4, v{L}
    s_mul_i32 s16, s14, 28           ; ks0
    s_lshl_b32 s17, s12, 1
    s_mul_i32 s17, s17, 112
    s_add_u32 s17, s17, s16
    s_lshl_b32 s17, s17, 10
    s_add_u32 s17, s17, {WS_H}
    s_lshl_b32 s18, s13, 1
    s_mul_i32 s18, s18, 112
    s_add_u32 s18, s18, s16
    s_lshl_b32 s18, s18, 10
    s_add_u32 s18, s18, {WS_WD}
    s_waitcnt lgkmcnt(0)
    s_add_u32 s20, s4, s18           ; W ns=0
    s_addc_u32 s21, s5, 0
    s_add_u32 s22, s20, 114688       ; W ns=1
    s_addc_u32 s23, s21, 0
    s_add_u32 s24, s4, s17           ; h ts=0
    s_addc_u32 s25, s5, 0
    s_add_u32 s26, s24, 114688       ; h ts=1
    s_addc_u32 s27, s25, 0
    ''')
    def loads(st):
        for o in range(2):
            for j in range(2):
                sb = 20 + 4 * o + 2 * j
                a(f'global_load_dwordx4 {vr(R[st][o][j],4)}, v{VA}, s[{sb}:{sb+1}] offset:{1024*st}')
    def bump():
        for sb in (20, 22, 24, 26):
            a(f's_add_u32 s{sb}, s{sb}, 4096')
            a(f's_addc_u32 s{sb+1}, s{sb+1}, 0')
    for ns in range(2):
        for ts in range(2):
            for i in range(16):
                a(f'v_mov_b32 v{ACC[ns][ts]+i}, 0')
    a(f'''
    v_mov_b32 v{VX}, {CNT}
    v_mov_b32 v{T[0]}, 0
    s_cmp_lg_u32 s14, 0
    s_cbranch_scc1 {name}_g1
    ds_write_b32 v{VX}, v{T[0]}
    s_waitcnt lgkmcnt(0)
    {name}_g1:
    s_barrier
    s_mov_b32 s30, 0
    ''')
    for st in range(4):
        loads(st)
    bump()
    a.label(f'{name}_gloop')
    for st in range(4):
        a('s_waitcnt vmcnt(12)')
        for ns in range(2):
            for ts in range(2):
                acc = vr(ACC[ns][ts], 16)
                a(f'v_mfma_f32_32x32x16_bf16 {acc}, {vr(R[st][0][ns],4)}, {vr(R[st][1][ts],4)}, {acc}')
        loads(st)
    bump()
    a(f'''
    s_cmp_lg_u32 s30, 0
    s_cbranch_scc1 {name}_g2
    s_barrier
    {name}_g2:
    s_add_u32 s30, s30, 1
    s_cmp_lt_u32 s30, 7
    s_cbranch_scc1 {name}_gloop
    s_memtime s[66:67]
    s_nop 15
    v_add_u32 v{T[1]}, {XB}, v{VA}
    s_cmp_eq_u32 s14, 0
    s_cbranch_scc1 {name}_gw
    ''')
    a(f'''
    {name}_spin:
    ds_read_b32 v{T[0]}, v{VX}
    s_waitcnt lgkmcnt(0)
    v_readfirstlane_b32 s31, v{T[0]}
    s_cmp_ge_u32 s31, s14
    s_cbranch_scc1 {name}_go
    s_sleep 4
    s_branch {name}_spin
    {name}_go:
    ''')
    regs = [ACC[ns][ts] + 4 * q for ns in range(2) for ts in range(2) for q in range(4)]
    for blk in range(4):
        for q in range(4):
            a(f'ds_read_b128 {vr(TMP+4*q,4)}, v{T[1]} offset:{(blk*4+q)*1024}')
        a('s_waitcnt lgkmcnt(0)')
        for q in range(4):
            for i in range(4):
                r = regs[blk * 4 + q] + i
                a(f'v_add_f32 v{r}, v{r}, v{TMP+4*q+i}')
    a(f'''
    s_cmp_eq_u32 s14, 3
    s_cbranch_scc1 {name}_gfin
    {name}_gw:
    ''')
    for idx, r in enumerate(regs):
        a(f'ds_write_b128 v{T[1]}, {vr(r,4)} offset:{idx*1024}')
    a(f'''
    s_add_u32 s31, s14, 1
    v_mov_b32 v{T[0]}, s31
    s_waitcnt lgkmcnt(0)
    ds_write_b32 v{VX}, v{T[0]}
    s_endpgm
    {name}_gfin:
    s_lshl_b32 s16, s12, 5
    s_lshl_b32 s17, s13, 1
    s_add_u32 s16, s16, s17
    s_lshl_b32 s16, s16, 12
    s_add_u32 s16, s16, {WS_F}
    s_add_u32 s16, s4, s16
    s_addc_u32 s17, s5, 0
    s_add_u32 s18, s16, 65536
    s_addc_u32 s19, s17, 0
    v_add_u32 v{T[2]}, 4096, v{VA}
    ''')
    for ns in range(2):
        for ts in range(2):
            for q in range(4):
                sb = 16 + 2 * ts
                va = VA if ns == 0 else T[2]
                a(f'global_store_dwordx4 v{va}, {vr(ACC[ns][ts]+4*q,4)}, s[{sb}:{sb+1}] offset:{q*1024}')
    if 'stamp' in ABL:
        a(f'''
        s_waitcnt vmcnt(0)
        s_memtime s[68:69]
        s_waitcnt lgkmcnt(0)
        s_sub_u32 s68, s68, s60
        s_sub_u32 s66, s66, s60
        v_mov_b32 v20, s66
        v_mov_b32 v21, s68
        v_mov_b32 v24, 128
        s_cmp_lg_u32 s2, 77
        s_cbranch_scc1 {name}_end
        v_cmp_eq_u32 vcc, 0, v1
        s_and_saveexec_b64 s[72:73], vcc
        s_cbranch_execz {name}_end
        global_store_dwordx2 v24, v[20:21], s[70:71]
        ''')
    a('s_endpgm')
```

```python
from asmlib import *
from k1_gemm1 import f2h, LOG2E, ABL, stamp

def gen_out(a):
    name = 'outp_kernel'
    kernel_head(a, name)
    L = 1
    VA = 2
    T = [4, 5, 6, 7, 8, 9, 10, 11]
    D = 16
    R = [[16 + 8 * s + 4 * o for o in range(2)] for s in range(D)]
    ACC = 144
    FR = 160
    XR = 176
    NV = 184
    t0, t1, t2, t3 = T[:4]
    a(f'''
    s_cmp_ge_u32 s2, 256
    s_cbranch_scc1 {name}_end
    s_load_dwordx2 s[4:5], s[0:1], 72
    s_load_dwordx2 s[10:11], s[0:1], 0
    s_load_dwordx2 s[44:45], s[0:1], 56
    v_lshrrev_b32 v{t0}, 6, v0
    v_and_b32 v{L}, 63, v0
    s_and_b32 s3, s2, 7
    v_readfirstlane_b32 s14, v{t0}
    s_lshr_b32 s15, s2, 3
    s_and_b32 s12, s15, 3
    s_lshl_b32 s3, s3, 2
    s_add_u32 s12, s12, s3           ; mi
    s_lshr_b32 s13, s15, 2           ; nj
    s_lshl_b32 s12, s12, 1
    s_and_b32 s16, s14, 1
    s_add_u32 s12, s12, s16          ; ts
    s_lshl_b32 s13, s13, 1
    s_lshr_b32 s16, s14, 1
    s_add_u32 s13, s13, s16          ; ns
    v_lshlrev_b32 v{VA}, 4, v{L}
    s_lshl_b32 s16, s12, 15
    s_add_u32 s16, s16, {WS_O}
    s_lshl_b32 s17, s13, 15
    s_add_u32 s17, s17, {WS_WO}
    s_lshl_b32 s18, s12, 4
    s_add_u32 s18, s18, s13
    s_lshl_b32 s18, s18, 12
    s_add_u32 s18, s18, {WS_F}
    s_waitcnt lgkmcnt(0)
    s_add_u32 s20, s4, s17           ; W
    s_addc_u32 s21, s5, 0
    s_add_u32 s22, s4, s16           ; O
    s_addc_u32 s23, s5, 0
    s_add_u32 s24, s4, s18           ; F
    s_addc_u32 s25, s5, 0
    ''')
    def load(ks):
        s = ks % D
        a(f'global_load_dwordx4 {vr(R[s][0],4)}, v{VA}, s[20:21] offset:{1024*(ks%4)}')
        a(f'global_load_dwordx4 {vr(R[s][1],4)}, v{VA}, s[22:23] offset:{1024*(ks%4)}')
        if ks % 4 == 3:
            a('s_add_u32 s20, s20, 4096\ns_addc_u32 s21, s21, 0\ns_add_u32 s22, s22, 4096\ns_addc_u32 s23, s23, 0')
    for ks in range(D):
        load(ks)
    a(f'''
    v_and_b32 v{t0}, 31, v{L}
    v_lshrrev_b32 v{t1}, 5, v{L}
    v_lshlrev_b32 v{t0}, 10, v{t0}
    v_lshl_add_u32 v{t0}, v{t1}, 3, v{t0}
    s_lshl_b32 s16, s12, 15
    s_lshl_b32 s17, s13, 6
    s_add_u32 s16, s16, s17
    s_add_u32 s30, s10, s16
    s_addc_u32 s31, s11, 0
    s_add_u32 s32, s44, s16
    s_addc_u32 s33, s45, 0
    s_mov_b32 s40, {f2h(-LOG2E)}
    ''')
    for i in range(16):
        a(f'v_mov_b32 v{ACC+i}, 0')
    n_out = 2 * D
    for ks in range(32):
        if ks == 32 - D:
            pass
        issued_after = 2 * (min(ks + D, 32) - ks - 1)
        extra = 8 if ks >= 32 - D else 0
        if ks == 32 - D:
            for q in range(4):
                a(f'global_load_dwordx4 {vr(FR+4*q,4)}, v{VA}, s[24:25] offset:{q*1024}')
            for q in range(4):
                a(f'global_load_dwordx2 {vr(XR+2*q,2)}, v{t0}, s[30:31] offset:{16*q}')
        a(f's_waitcnt vmcnt({issued_after + extra})')
        s = ks % D
        a(f'v_mfma_f32_32x32x16_bf16 {vr(ACC,16)}, {vr(R[s][0],4)}, {vr(R[s][1],4)}, {vr(ACC,16)}')
        if ks + D < 32:
            load(ks + D)
    a('s_waitcnt vmcnt(0)')
    TT = 16
    for q in range(4):
        f_ = FR + 4 * q
        for i in range(4):
            a(f'v_mul_f32 v{TT+4*q+i}, s40, v{f_+i}')
    for q in range(4):
        for i in range(4):
            a(f'v_exp_f32 v{TT+4*q+i}, v{TT+4*q+i}')
    for q in range(4):
        for i in range(4):
            a(f'v_add_f32 v{TT+4*q+i}, 1.0, v{TT+4*q+i}')
    for q in range(4):
        for i in range(4):
            a(f'v_rcp_f32 v{TT+4*q+i}, v{TT+4*q+i}')
    for q in range(4):
        for i in range(4):
            a(f'v_mul_f32 v{TT+4*q+i}, v{TT+4*q+i}, v{FR+4*q+i}')
    a('s_nop 7')
    for q in range(4):
        for i in range(4):
            a(f'v_mul_f32 v{TT+4*q+i}, v{TT+4*q+i}, v{ACC+4*q+i}')
        x = XR + 2 * q
        U = 40
        a(f'v_lshlrev_b32 v{U}, 16, v{x}')
        a(f'v_and_b32 v{U+1}, 0xffff0000, v{x}')
        a(f'v_lshlrev_b32 v{U+2}, 16, v{x+1}')
        a(f'v_and_b32 v{U+3}, 0xffff0000, v{x+1}')
        for i in range(4):
            a(f'v_add_f32 v{TT+4*q+i}, v{TT+4*q+i}, v{U+i}')
        a(f'v_cvt_pk_bf16_f32 v{48+2*q}, v{TT+4*q}, v{TT+4*q+1}')
        a(f'v_cvt_pk_bf16_f32 v{49+2*q}, v{TT+4*q+2}, v{TT+4*q+3}')
        a(f'global_store_dwordx2 v{t0}, {vr(48+2*q,2)}, s[32:33] offset:{16*q}')
    a.label(f'{name}_end')
    a('s_endpgm')
    kernel_desc(a, name, NV, 48)
    return (name, 256, 256, 0)
```

```python
from asmlib import *
import struct, os
ABL = os.environ.get('ABL', '')
def f2h(x):
    return '0x%08x' % struct.unpack('<I', struct.pack('<f', x))[0]

LOG2E = 1.4426950408889634
A_SLOT = 16384
B_SLOT = 40960
A_BASE = 0
B_BASE = 2 * A_SLOT
LDS_ST = B_BASE + 3 * B_SLOT
LDS_CS = LDS_ST + 1024
LDS_K1 = LDS_CS + 2560

def stamp(a, k):
    if 'stamp' in ABL:
        a(f's_memtime s[{60+2*k}:{61+2*k}]')

def gen_gemm1(a):
    name = 'gemm1_kernel'
    kernel_head(a, name)
    V_LANE = 1
    V_RDA = [2, 3]
    V_RDB = 4
    V_ONE = 8
    V_T = [5, 6, 7, 12, 13, 14, 15]
    V_X = [[16 + 16 * s + 4 * r for r in range(4)] for s in range(2)]
    V_W = [48 + 4 * u for u in range(5)]
    V_CS = [68 + 4 * u for u in range(5)]
    V_ACC = [[88 + 16 * u + 4 * r for r in range(4)] for u in range(5)]
    NV = 168
    V_OFFA = [16, 17, 18, 19]
    V_OFFB = [[20, 21], [22, 23]]
    L = V_LANE
    t0, t1, t2, t3 = V_T[:4]
    a(f'''
    s_cmp_ge_u32 s2, 256
    s_cbranch_scc1 {name}_end
    ''')
    stamp(a, 0)
    if 'rt' in ABL: rt_start(a)
    a(f'''
    s_load_dwordx2 s[4:5], s[0:1], 72
    s_load_dwordx2 s[50:51], s[0:1], 0
    s_load_dwordx2 s[70:71], s[0:1], 64
    s_load_dwordx2 s[6:7], s[0:1], 8
    s_load_dwordx2 s[8:9], s[0:1], 32
    s_load_dwordx2 s[10:11], s[0:1], 40
    v_lshrrev_b32 v{t0}, 6, v0
    v_and_b32 v{L}, 63, v0
    s_and_b32 s3, s2, 7
    v_readfirstlane_b32 s14, v{t0}
    s_lshr_b32 s15, s2, 3
    s_and_b32 s12, s3, 1
    s_lshl_b32 s12, s12, 3
    s_and_b32 s16, s15, 7
    s_add_u32 s12, s12, s16        ; mi
    s_lshr_b32 s13, s3, 1
    s_lshl_b32 s13, s13, 2
    s_lshr_b32 s16, s15, 3
    s_add_u32 s13, s13, s16        ; nj
    s_cmp_ge_u32 s14, 8
    s_cbranch_scc1 {name}_loader
    ''')
    a(f'''
    v_and_b32 v{t0}, 15, v{L}
    v_lshrrev_b32 v{t1}, 1, v{t0}
    v_lshrrev_b32 v{t2}, 4, v{L}
    v_xor_b32 v{t1}, v{t1}, v{t2}
    v_lshlrev_b32 v{t1}, 4, v{t1}
    v_lshl_add_u32 v{t0}, v{t0}, 7, v{t1}
    s_and_b32 s16, s14, 1
    s_lshl_b32 s16, s16, 13
    v_add_u32 v{V_RDA[0]}, s16, v{t0}
    v_xor_b32 v{V_RDA[1]}, 64, v{V_RDA[0]}
    v_lshrrev_b32 v{t0}, 4, v{L}
    v_and_b32 v{t1}, 15, v{L}
    v_lshrrev_b32 v{t2}, 2, v{t1}
    v_lshl_add_u32 v{t3}, v{t0}, 2, v{t2}      ; 4g+r
    v_and_b32 v{t0}, 1, v{t0}
    v_lshrrev_b32 v{t2}, 1, v{t2}
    v_lshl_add_u32 v{t0}, v{t0}, 1, v{t2}      ; 2(g&1)+(r>>1)
    s_lshr_b32 s16, s14, 1
    v_xor_b32 v{t0}, s16, v{t0}
    v_lshlrev_b32 v{t0}, 5, v{t0}
    v_and_b32 v{t1}, 3, v{t1}
    v_lshl_add_u32 v{t0}, v{t1}, 3, v{t0}
    v_lshl_add_u32 v{t0}, v{t3}, 7, v{t0}
    v_add_u32 v{V_RDB}, {B_BASE}, v{t0}
    ''')
    for i in range(4):
        a(f'v_mov_b32 v{V_ONE+i}, 0x3f803f80')
    for lc in range(5):
        for r in range(4):
            for i in range(4):
                a(f'v_mov_b32 v{V_ACC[lc][r]+i}, 0')
    for lc in range(5):
        for i in range(4):
            a(f'v_mov_b32 v{V_CS[lc]+i}, 0')
    a(f'''
    s_mov_b32 s40, 0            ; i
    s_mov_b32 s42, 0
    s_waitcnt lgkmcnt(0)
    s_and_b32 s16, s14, 1
    s_cmp_eq_u32 s16, 1
    s_cbranch_scc1 {name}_wm1
    s_cmp_lt_u32 s13, 8
    s_cbranch_scc1 {name}_vV0
    s_cmp_lt_u32 s13, 14
    s_cbranch_scc1 {name}_vK0
    s_branch {name}_vB0
    {name}_wm1:
    s_cmp_lt_u32 s13, 8
    s_cbranch_scc1 {name}_vV1
    s_cmp_lt_u32 s13, 14
    s_cbranch_scc1 {name}_vK1
    s_branch {name}_vB1
    ''')
    def rdX(ks, r):
        if 'noreads' in ABL: return 's_nop 0'
        return f'ds_read_b128 {vr(V_X[ks][r],4)}, v{V_RDA[ks]} offset:{r*2048}'
    def rdW(ks, lc):
        if 'noreads' in ABL: return []
        return [f'ds_read_b64_tr_b16 {vr(V_W[lc]+2*jhi,2)}, v{V_RDB} offset:{lc*8192 + ks*4096 + jhi*2048}' for jhi in range(2)]
    def phase(ks, var, ones):
        nks = ks ^ 1
        for lc in range(5):
            if lc == 0:
                a('s_waitcnt lgkmcnt(4)')
            elif lc == 3:
                a('s_waitcnt lgkmcnt(11)')
            elif lc == 4:
                a('s_waitcnt lgkmcnt(12)')
            for r in range(4):
                acc = vr(V_ACC[lc][r], 4)
                if var == 'V' and lc == 4:
                    a(f'v_mfma_f32_16x16x32_bf16 {acc}, {vr(V_X[ks][r],4)}, {vr(V_W[lc],4)}, {acc}')
                else:
                    a(f'v_mfma_f32_16x16x32_bf16 {acc}, {vr(V_W[lc],4)}, {vr(V_X[ks][r],4)}, {acc}')
                if r == 1 and lc < 4:
                    a(rdX(nks, lc))
            if ones and 'noones' not in ABL:
                cs = vr(V_CS[lc], 4)
                a(f'v_mfma_f32_16x16x32_bf16 {cs}, {vr(V_W[lc],4)}, {vr(V_ONE,4)}, {cs}')
            for x_ in rdW(nks, lc): a(x_)
    for var in ['V', 'K', 'B']:
      for wm in range(2):
        a.label(f'{name}_v{var}{wm}')
        stamp(a, 1)
        a('s_barrier')
        for r in range(4): a(rdX(0, r))
        for lc in range(5):
            for x_ in rdW(0, lc): a(x_)
        a.label(f'{name}_loop{var}{wm}')
        phase(0, var, wm == 0)
        a(f'''
        s_add_u32 s44, s42, {B_SLOT}
        s_cmp_eq_u32 s44, {3*B_SLOT}
        s_cselect_b32 s44, 0, s44
        s_sub_u32 s45, s44, s42
        s_mov_b32 s42, s44
        s_waitcnt lgkmcnt(0)
        v_xor_b32 v{V_RDA[0]}, {A_SLOT}, v{V_RDA[0]}
        v_xor_b32 v{V_RDA[1]}, {A_SLOT}, v{V_RDA[1]}
        v_add_u32 v{V_RDB}, s45, v{V_RDB}
        s_barrier
        ''')
        if 'chunkst' in ABL:
            a('s_memtime s[80:81]')
            a('s_waitcnt lgkmcnt(0)')
            a('s_sub_u32 s80, s80, s60')
            a('s_mov_b32 m0, s40')
            a('s_nop 0')
            a('v_writelane_b32 v0, s80, m0')
        phase(1, var, wm == 1)
        a(f'''
        s_add_u32 s40, s40, 1
        s_cmp_lt_u32 s40, 8
        s_cbranch_scc1 {name}_loop{var}{wm}
        s_waitcnt lgkmcnt(0)
        s_branch {name}_epi{var}
        ''')
      if True:
        a.label(f'{name}_epi{var}')
        stamp(a, 2)
        a('s_nop 7')
        a('s_nop 3')
        a(f'''
        s_and_b32 s16, s14, 1
        s_mul_i32 s16, s16, 1280
        s_lshr_b32 s15, s14, 1        ; wc
        s_lshl_b32 s17, s15, 6
        s_add_u32 s16, s16, s17
        s_add_u32 s16, s16, {LDS_CS}
        v_lshrrev_b32 v{t1}, 4, v{L}
        v_lshl_add_u32 v16, v{t1}, 4, s16
        ''')
        for lc in range(5):
            a(f'ds_write_b128 v16, {vr(V_CS[lc],4)} offset:{lc*256}')
        a('s_waitcnt lgkmcnt(0)')
        a('s_barrier')
        a(f'''
        s_and_b32 s30, s14, 1
        s_lshl_b32 s30, s30, 6
        s_lshl_b32 s31, s12, 7
        s_add_u32 s30, s30, s31       ; row0
        v_and_b32 v{t0}, 15, v{L}
        s_mov_b32 s40, {f2h(-2*LOG2E*0.7978845608028654)}
        s_mov_b32 s41, {f2h(-2*LOG2E*0.7978845608028654*0.044715)}
        s_mov_b32 s42, {f2h(0.25*LOG2E)}
        ''')
        vQK, vV, vH, vC = V_T[4], V_T[5], V_T[6], 8
        ct_lcs = [0, 1, 2, 3] if var == 'V' else [0, 1, 2, 3, 4]
        a(f'''
        s_and_b32 s16, s14, 1
        s_lshl_b32 s16, s16, 8
        s_add_u32 s16, s16, {LDS_ST}
        v_lshl_add_u32 v16, v{t0}, 2, s16
        s_lshl_b32 s17, s15, 6
        s_add_u32 s17, s17, {LDS_CS}
        v_lshl_add_u32 v17, v{t1}, 4, s17
        ''')
        for r in range(4):
            a(f'ds_read_b32 v{56+r}, v16 offset:{64*r}')
            a(f'ds_read_b32 v{60+r}, v16 offset:{512+64*r}')
        for lc in ct_lcs:
            a(f'ds_read_b128 {vr(64+4*lc,4)}, v17 offset:{256*lc}')
            a(f'ds_read_b128 {vr(20+4*lc,4)}, v17 offset:{1280+256*lc}')
        if var == 'V':
            a(f'''
            v_lshl_add_u32 v18, v{t1}, 4, s16
            v_lshl_add_u32 v19, v{t0}, 2, s17
            ds_read_b32 v40, v19 offset:1024
            ds_read_b32 v41, v19 offset:{1280+1024}
            ''')
        a('s_waitcnt lgkmcnt(0)')
        for lc in ct_lcs:
            for i in range(4):
                a(f'v_add_f32 v{64+4*lc+i}, v{64+4*lc+i}, v{20+4*lc+i}')
        for lc in ct_lcs:
            for r in range(4):
                for i in range(4):
                    x_ = V_ACC[lc][r] + i
                    a(f'v_fma_f32 v{x_}, v{60+r}, v{64+4*lc+i}, v{x_}')
                for i in range(4):
                    x_ = V_ACC[lc][r] + i
                    a(f'v_mul_f32 v{x_}, v{56+r}, v{x_}')
        if var == 'V':
            a('v_add_f32 v40, v40, v41')
            for r in range(4):
                a(f'ds_read_b128 v[44:47], v18 offset:{64*r}')
                a(f'ds_read_b128 v[48:51], v18 offset:{512+64*r}')
                a('s_waitcnt lgkmcnt(0)')
                for i in range(4):
                    x_ = V_ACC[4][r] + i
                    a(f'v_fma_f32 v{x_}, v{48+i}, v40, v{x_}')
                for i in range(4):
                    x_ = V_ACC[4][r] + i
                    a(f'v_mul_f32 v{x_}, v{44+i}, v{x_}')
        lane_qk = f'''
            v_lshlrev_b32 v{vQK}, 4, v{t0}
            v_lshrrev_b32 v{t2}, 1, v{t1}
            v_lshl_add_u32 v{vQK}, v{t2}, 9, v{vQK}
            v_and_b32 v{t3}, 1, v{t1}
            v_lshl_add_u32 v{vQK}, v{t3}, 3, v{vQK}
            v_lshlrev_b32 v{vV}, 4, v{t0}
            v_lshl_add_u32 v{vV}, v{t3}, 8, v{vV}
            v_lshl_add_u32 v{vV}, v{t2}, 3, v{vV}
            s_lshl_b32 s34, s30, 5         ; row0*32
            '''
        def store_qkv(lc, ty, T):
            for r in range(4):
                acc = V_ACC[lc][r]
                if ty == 'q':
                    for i in range(4):
                        a(f'v_mul_f32 v{acc+i}, s42, v{acc+i}')
                T2 = T + 2 * r
                a(f'v_cvt_pk_bf16_f32 v{T2}, v{acc}, v{acc+1}')
                a(f'v_cvt_pk_bf16_f32 v{T2+1}, v{acc+2}, v{acc+3}')
                if ty == 'v':
                    a(f'global_store_dwordx2 v{vV}, {vr(T2,2)}, s[36:37] offset:{512*r}')
                else:
                    a(f'global_store_dwordx2 v{vQK}, {vr(T2,2)}, s[36:37] offset:{(r>>1)*1024 + (r&1)*256}')
        if var in 'VK':
            a(lane_qk)
            if var == 'V':
                a(f's_lshl_b32 s35, s13, 2')
                wsoff = WS_V
            else:
                a(f's_sub_u32 s35, s13, 8')
                a(f's_lshl_b32 s35, s35, 2')
                wsoff = WS_K
            a(f'''
            s_add_u32 s35, s35, s15
            s_lshl_b32 s35, s35, 16
            s_add_u32 s35, s35, s34
            s_add_u32 s35, s35, {wsoff}
            s_add_u32 s36, s4, s35
            s_addc_u32 s37, s5, 0
            ''')
            store_qkv(4, var.lower(), 40)
            a(f'''
            s_lshr_b32 s32, s30, 5
            s_mul_i32 s32, s32, 112
            s_lshl_b32 s33, s13, 3
            s_add_u32 s32, s32, s33
            s_add_u32 s32, s32, s15
            s_lshl_b32 s32, s32, 10
            s_add_u32 s32, s32, {WS_H}
            s_add_u32 s32, s4, s32
            s_addc_u32 s33, s5, 0
            v_mov_b32 v{vC}, s40
            v_add_u32 v{vH}, 4096, v{vQK}
            ''')
            T = 16
            for r in range(4):
                for j in range(2):
                    g = V_ACC[j][r]
                    u = V_ACC[2 + j][r]
                    for i in range(4):
                        a(f'v_mul_f32 v{T+i}, v{g+i}, v{g+i}')
                    for i in range(4):
                        a(f'v_fma_f32 v{T+i}, v{T+i}, s41, v{vC}')
                    for i in range(4):
                        a(f'v_mul_f32 v{T+i}, v{T+i}, v{g+i}')
                    for i in range(4):
                        a(f'v_exp_f32 v{T+i}, v{T+i}')
                    for i in range(4):
                        a(f'v_mul_f32 v{T+4+i}, v{g+i}, v{u+i}')
                    for i in range(4):
                        a(f'v_add_f32 v{T+i}, 1.0, v{T+i}')
                    for i in range(4):
                        a(f'v_rcp_f32 v{T+i}, v{T+i}')
                    a('s_nop 0')
                    for i in range(4):
                        a(f'v_mul_f32 v{T+i}, v{T+i}, v{T+4+i}')
                    T2 = T + 8 + 2 * j + 4 * (r & 1)
                    a(f'v_cvt_pk_bf16_f32 v{T2}, v{T}, v{T+1}')
                    a(f'v_cvt_pk_bf16_f32 v{T2+1}, v{T+2}, v{T+3}')
                    a(f'global_store_dwordx2 v{vH if j else vQK}, {vr(T2,2)}, s[32:33] offset:{256*(r&1)}')
                if r == 1:
                    a('s_add_u32 s32, s32, 114688')
                    a('s_addc_u32 s33, s33, 0')
        else:
            a(lane_qk)
            a(f'''
            s_sub_u32 s35, s13, 8
            s_lshl_b32 s35, s35, 2
            s_add_u32 s35, s35, s15
            s_lshl_b32 s35, s35, 16
            s_add_u32 s35, s35, s34
            s_add_u32 s35, s35, {WS_K}
            s_add_u32 s36, s4, s35
            s_addc_u32 s37, s5, 0
            ''')
            store_qkv(0, 'k', 40)
            for j in range(1, 5):
                a(f'''
                s_sub_u32 s35, s13, 14
                s_lshl_b32 s35, s35, 4
                s_add_u32 s35, s35, s15
                s_add_u32 s35, s35, {4*(j-1)}
                s_lshl_b32 s35, s35, 16
                s_add_u32 s35, s35, s34
                s_add_u32 s35, s35, {WS_Q}
                s_add_u32 s36, s4, s35
                s_addc_u32 s37, s5, 0
                ''')
                store_qkv(j, 'q', 40 + 8 * (j & 1))
        if 'stamp' in ABL:
            a(f'''
            s_waitcnt vmcnt(0)
            s_memtime s[66:67]
            s_waitcnt lgkmcnt(0)
            s_sub_u32 s62, s62, s60
            s_sub_u32 s64, s64, s60
            s_sub_u32 s66, s66, s60
            v_mov_b32 v20, s62
            v_mov_b32 v21, s64
            v_mov_b32 v22, s66
            v_mov_b32 v23, s2
            s_lshl_b32 s68, s14, 4
            v_mov_b32 v24, s68
            s_cmp_lg_u32 s2, 77
            s_cbranch_scc1 {name}_end
            v_cmp_eq_u32 vcc, 0, v1
            s_and_saveexec_b64 s[68:69], vcc
            s_cbranch_execz {name}_end
            global_store_dwordx4 v24, v[20:23], s[70:71]
            s_mov_b64 exec, s[68:69]
            s_cmp_lg_u32 s14, 0
            s_cbranch_scc1 {name}_end
            v_lshlrev_b32 v24, 2, v1
            v_cmp_gt_u32 vcc, 8, v1
            s_and_saveexec_b64 s[68:69], vcc
            global_store_dword v24, v0, s[70:71] offset:128
            ''')
        if 'rt' in ABL: rt_end(a, 1, a.newlabel('rt'))
        a('s_endpgm')

    a.label(f'{name}_loader')
    a(f'''
    s_sub_u32 s14, s14, 8            ; lw
    s_and_b32 s16, s14, 1
    s_lshl_b32 s16, s16, 2
    v_lshrrev_b32 v{t0}, 4, v{L}
    v_add_u32 v{t0}, s16, v{t0}
    v_and_b32 v{t1}, 7, v{L}
    v_xor_b32 v{t0}, v{t0}, v{t1}
    v_lshlrev_b32 v{t0}, 4, v{t0}
    v_lshrrev_b32 v{t1}, 3, v{L}
    v_lshl_add_u32 v{V_OFFA[0]}, v{t1}, 10, v{t0}
    v_add_u32 v{V_OFFA[1]}, 0x8000, v{V_OFFA[0]}
    v_add_u32 v{V_OFFA[2]}, 0x10000, v{V_OFFA[0]}
    v_add_u32 v{V_OFFA[3]}, 0x18000, v{V_OFFA[0]}
    v_lshrrev_b32 v{t0}, 3, v{L}
    v_and_b32 v{t0}, 3, v{t0}
    v_lshrrev_b32 v{t1}, 5, v{L}
    v_lshl_add_u32 v{t0}, v{t1}, 3, v{t0}
    v_lshrrev_b32 v{t1}, 1, v{L}
    v_lshrrev_b32 v{t2}, 4, v{L}
    v_xor_b32 v{t1}, v{t1}, v{t2}
    v_and_b32 v{t1}, 3, v{t1}
    v_lshlrev_b32 v{t1}, 5, v{t1}
    v_and_b32 v{t2}, 1, v{L}
    v_lshl_add_u32 v{t1}, v{t2}, 4, v{t1}
    v_mul_u32_u24 v{t2}, 3072, v{t0}
    v_add_u32 v{V_OFFB[0][0]}, v{t2}, v{t1}
    v_add_u32 v{V_OFFB[0][1]}, {32*3072}, v{V_OFFB[0][0]}
    v_mul_u32_u24 v{t2}, 3584, v{t0}
    v_add_u32 v{V_OFFB[1][0]}, v{t2}, v{t1}
    v_add_u32 v{V_OFFB[1][1]}, {32*3584}, v{V_OFFB[1][0]}
    s_waitcnt lgkmcnt(0)
    s_lshl_b32 s16, s12, 17
    s_lshl_b32 s17, s14, 13
    s_add_u32 s16, s16, s17
    s_add_u32 s16, s50, s16
    s_addc_u32 s17, s51, 0
    s_lshl_b32 s30, s14, 10          ; lw*1024
    s_lshr_b32 s32, s14, 1
    s_lshl_b32 s31, s32, 2
    s_and_b32 s32, s14, 1
    s_lshl_b32 s32, s32, 4
    s_add_u32 s31, s31, s32
    s_mul_i32 s32, s31, 3072
    s_mul_i32 s33, s31, 3584
    s_mov_b32 s46, {64*3584}
    s_cmp_ge_u32 s13, 14
    s_cbranch_scc1 {name}_srcB
    s_lshl_b32 s34, s13, 8           ; 2nj*128
    s_add_u32 s34, s34, s33
    s_add_u32 s18, s8, s34
    s_addc_u32 s19, s9, 0
    s_add_u32 s20, s18, 128
    s_addc_u32 s21, s19, 0
    s_add_u32 s22, s10, s34
    s_addc_u32 s23, s11, 0
    s_add_u32 s24, s22, 128
    s_addc_u32 s25, s23, 0
    s_lshl_b32 s34, s13, 7
    s_add_u32 s35, s34, 2048
    s_cmp_lt_u32 s13, 8
    s_cselect_b32 s34, s35, s34
    s_add_u32 s34, s34, s32
    s_add_u32 s26, s6, s34
    s_addc_u32 s27, s7, 0
    s_branch {name}_srcdone
    {name}_srcB:
    s_lshl_b32 s34, s13, 7
    s_add_u32 s34, s34, s32
    s_add_u32 s18, s6, s34
    s_addc_u32 s19, s7, 0
    s_sub_u32 s34, s13, 14
    s_lshl_b32 s34, s34, 9
    s_add_u32 s34, s34, s32
    s_add_u32 s20, s6, s34
    s_addc_u32 s21, s7, 0
    s_add_u32 s22, s20, 128
    s_addc_u32 s23, s21, 0
    s_add_u32 s24, s20, 256
    s_addc_u32 s25, s21, 0
    s_add_u32 s26, s20, 384
    s_addc_u32 s27, s21, 0
    s_mov_b32 s46, {64*3072}
    v_mov_b32 v{V_OFFB[1][0]}, v{V_OFFB[0][0]}
    v_mov_b32 v{V_OFFB[1][1]}, v{V_OFFB[0][1]}
    {name}_srcdone:
    ''')
    def dmaA(slot):
        if 'nodma' in ABL: return
        for m in range(4):
            a(f's_add_u32 m0, {slot}, {A_BASE + m*4096}')
            a('s_nop 0')
            a(f'global_load_lds_dwordx4 v{V_OFFA[m]}, s[16:17]')
        a('s_add_u32 s16, s16, 128')
        a('s_addc_u32 s17, s17, 0')
    def dmaB(slot):
        if 'nodma' in ABL: return
        for lc in range(5):
            sb = 18 + 2 * lc
            rs = 1 if lc < 4 else 0
            for eh in range(2):
                a(f's_add_u32 m0, {slot}, {B_BASE + lc*8192 + eh*4096}')
                a('s_nop 0')
                a(f'global_load_lds_dwordx4 v{V_OFFB[rs][eh]}, s[{sb}:{sb+1}]')
            if lc < 4:
                a(f's_add_u32 s{sb}, s{sb}, s46')
            else:
                a(f's_add_u32 s{sb}, s{sb}, {64*3072}')
            a(f's_addc_u32 s{sb+1}, s{sb+1}, 0')
    a(f's_add_u32 s47, s30, {A_SLOT}')
    a(f's_add_u32 s48, s30, {B_SLOT}')
    a(f's_add_u32 s49, s30, {2*B_SLOT}')
    a(f'''
    v_lshrrev_b32 v24, 2, v{L}
    v_and_b32 v25, 3, v{L}
    v_lshlrev_b32 v25, 4, v25
    v_lshl_add_u32 v24, v24, 10, v25
    s_lshl_b32 s52, s12, 17
    s_lshl_b32 s53, s14, 15
    s_add_u32 s52, s52, s53
    s_add_u32 s52, s50, s52
    s_addc_u32 s53, s51, 0
    s_add_u32 s54, s52, 16384
    s_addc_u32 s55, s53, 0
    s_load_dwordx2 s[56:57], s[0:1], 48
    s_load_dwordx2 s[58:59], s[0:1], 16
    ''')
    dmaA('s30'); dmaB('s30'); dmaA('s47'); dmaB('s48'); dmaB('s49')
    a(f'''
    v_and_b32 v26, 31, v{L}
    v_lshrrev_b32 v27, 5, v{L}
    v_lshlrev_b32 v26, 1, v26
    v_lshl_add_u32 v26, v27, 13, v26      ; n*2 + hh*8192
    v_add_u32 v27, 4096, v26
    v_lshlrev_b32 v28, 4, v{L}            ; lane*16
    s_lshl_b32 s72, s2, 2
    s_add_u32 s72, s72, s14
    s_waitcnt lgkmcnt(0)
    s_mov_b64 s[74:75], s[4:5]
    s_mov_b64 s[76:77], s[4:5]
    s_mov_b64 s[78:79], s[4:5]
    s_mov_b64 s[80:81], s[56:57]
    s_waitcnt vmcnt(24)
    s_barrier
    ''')
    def stats_process(hs):
        for h in hs:
            a('v_mov_b32 v8, 0\nv_mov_b32 v9, 0\nv_mov_b32 v10, 0\nv_mov_b32 v11, 0')
            for j_ in range(16):
                for i_ in range(4):
                    x = XS + 64 * h + 4 * j_ + i_
                    tt = 12 if (i_ & 1) == 0 else 14
                    a(f'v_lshlrev_b32 v{tt}, 16, v{x}')
                    a(f'v_and_b32 v{tt+1}, 0xffff0000, v{x}')
                    a(f'v_pk_add_f32 v[8:9], v[8:9], v[{tt}:{tt+1}]')
                    a(f'v_pk_fma_f32 v[10:11], v[{tt}:{tt+1}], v[{tt}:{tt+1}], v[10:11]')
            a(f'''
            v_add_f32 v8, v8, v9
            v_add_f32 v10, v10, v11
            s_nop 1
            v_add_f32_dpp v8, v8, v8 quad_perm:[1,0,3,2] row_mask:0xf bank_mask:0xf
            v_add_f32_dpp v10, v10, v10 quad_perm:[1,0,3,2] row_mask:0xf bank_mask:0xf
            s_nop 1
            v_add_f32_dpp v8, v8, v8 quad_perm:[2,3,0,1] row_mask:0xf bank_mask:0xf
            v_add_f32_dpp v10, v10, v10 quad_perm:[2,3,0,1] row_mask:0xf bank_mask:0xf
            s_mov_b32 s82, 0x3b000000
            s_mov_b32 s83, 0x3727c5ac
            v_mov_b32 v2, s83
            v_mul_f32 v8, s82, v8
            v_fma_f32 v10, v10, s82, v2
            v_fma_f32 v10, -v8, v8, v10
            v_max_f32 v10, v10, v2
            v_rsq_f32 v10, v10
            v_sub_f32 v8, 0, v8
            v_lshrrev_b32 v3, 2, v{L}
            v_lshlrev_b32 v3, 2, v3
            s_lshl_b32 s82, s14, 7
            s_add_u32 s82, s82, {LDS_ST + 64*h}
            v_add_u32 v3, s82, v3
            ds_write_b32 v3, v10
            ds_write_b32 v3, v8 offset:512
            ''')
    def tr_issue():
        for j_ in range(3):
            lab = f'{name}_tr{j_}'
            rb = 32 + 8 * j_
            a(f'''
            s_add_u32 s82, s72, {1024*j_}
            s_min_u32 s82, s82, 2303
            s_cmp_ge_u32 s82, 1792
            s_cbranch_scc1 {lab}_wo
            s_mul_hi_u32 s83, s82, {(2**32 + 111)//112}
            s_mul_i32 s84, s83, 112
            s_sub_u32 s84, s82, s84
            s_lshl_b32 s85, s84, 14
            s_lshl_b32 s86, s83, 6
            s_add_u32 s85, s85, s86
            s_add_u32 s80, s56, s85
            s_addc_u32 s81, s57, 0
            s_lshl_b32 s85, s82, 10
            s_add_u32 s85, s85, {WS_WD}
            s_branch {lab}_go
            {lab}_wo:
            s_sub_u32 s82, s82, 1792
            s_lshr_b32 s83, s82, 5
            s_and_b32 s84, s82, 31
            s_lshl_b32 s85, s84, 14
            s_lshl_b32 s86, s83, 6
            s_add_u32 s85, s85, s86
            s_add_u32 s80, s58, s85
            s_addc_u32 s81, s59, 0
            s_lshl_b32 s85, s82, 10
            s_add_u32 s85, s85, {WS_WO}
            {lab}_go:
            s_add_u32 s{74+2*j_}, s4, s85
            s_addc_u32 s{75+2*j_}, s5, 0
            ''')
            for jj in range(8):
                a(f'global_load_ushort v{rb + jj}, v{26 if jj < 4 else 27}, s[80:81] offset:{(jj%4)*1024}')
    def tr_store():
        for j_ in range(3):
            rb = 32 + 8 * j_
            a(f'''
            v_lshl_or_b32 v{rb}, v{rb+1}, 16, v{rb}
            v_lshl_or_b32 v{rb+1}, v{rb+3}, 16, v{rb+2}
            v_lshl_or_b32 v{rb+2}, v{rb+5}, 16, v{rb+4}
            v_lshl_or_b32 v{rb+3}, v{rb+7}, 16, v{rb+6}
            global_store_dwordx4 v28, v[{rb}:{rb+3}], s[{74+2*j_}:{75+2*j_}]
            ''')
    a(f'''
    v_and_b32 v2, 15, v{L}
    v_lshrrev_b32 v3, 1, v2
    v_lshrrev_b32 v4, 4, v{L}
    v_xor_b32 v3, v3, v4
    v_lshlrev_b32 v3, 4, v3
    v_lshl_add_u32 v2, v2, 7, v3
    s_lshl_b32 s82, s14, 12
    v_add_u32 v60, s82, v2
    v_xor_b32 v61, 64, v60
    ''')
    for i_ in range(4):
        a(f'v_mov_b32 v{96+i_}, 0x3f803f80')
    for i_ in range(16):
        a(f'v_mov_b32 v{80+i_}, 0')
    def stats(slot):
        if 'nostats' in ABL: return
        for s_ in range(2):
            for ks in range(2):
                a(f'ds_read_b128 {vr(64+8*s_+4*ks,4)}, v{60+ks} offset:{A_BASE + slot*A_SLOT + s_*2048}')
        a('s_waitcnt lgkmcnt(0)')
        for ks in range(2):
            for s_ in range(2):
                x = vr(64 + 8 * s_ + 4 * ks, 4)
                a(f'v_mfma_f32_16x16x32_bf16 {vr(80+4*s_,4)}, {x}, v[96:99], {vr(80+4*s_,4)}')
                a(f'v_mfma_f32_16x16x32_bf16 {vr(88+4*s_,4)}, {x}, {x}, {vr(88+4*s_,4)}')
    stats(0)
    N = [10, 10, 34, 10, 13, 10, 0, 0]
    for it in range(8):
        a(f's_waitcnt vmcnt({N[it]})')
        a('s_barrier')
        if it <= 5:
            a(f's_add_u32 s45, s30, {(it % 2) * A_SLOT}')
            dmaA('s45')
        if it <= 4:
            a(f's_add_u32 s45, s30, {(it % 3) * B_SLOT}')
            dmaB('s45')
        if it < 7:
            stats((it + 1) % 2)
        if it == 1:
            tr_issue()
        if it == 3:
            tr_store()
    a(f'''
    v_and_b32 v24, 3, v{L}
    v_and_b32 v25, 15, v{L}
    v_lshrrev_b32 v26, 2, v25
    v_lshrrev_b32 v27, 4, v{L}
    s_mov_b32 s84, 0x3b000000
    s_mov_b32 s85, 0x3727c5ac
    v_mov_b32 v28, s85
    v_lshlrev_b32 v25, 2, v25
    s_lshl_b32 s82, s14, 7
    s_add_u32 s82, s82, {LDS_ST}
    v_add_u32 v25, s82, v25
    s_nop 7
    ''')
    for s_ in range(2):
        d1, d2 = 80 + 4 * s_, 88 + 4 * s_
        for i_ in range(1, 4):
            a(f'v_cmp_eq_u32 vcc, {i_}, v24')
            a(f'v_cndmask_b32 v{d1}, v{d1}, v{d1+i_}, vcc')
            a(f'v_cndmask_b32 v{d2}, v{d2}, v{d2+i_}, vcc')
        a(f'''
        v_mul_f32 v{d1}, s84, v{d1}
        v_fma_f32 v{d2}, v{d2}, s84, v28
        v_fma_f32 v{d2}, -v{d1}, v{d1}, v{d2}
        v_max_f32 v{d2}, v{d2}, v28
        v_rsq_f32 v{d2}, v{d2}
        v_sub_f32 v{d1}, 0, v{d1}
        ''')
    a(f'''
    v_cmp_eq_u32 vcc, v26, v27
    s_and_saveexec_b64 s[86:87], vcc
    ds_write_b32 v25, v88
    ds_write_b32 v25, v80 offset:512
    ds_write_b32 v25, v92 offset:64
    ds_write_b32 v25, v84 offset:576
    s_mov_b64 exec, s[86:87]
    s_waitcnt lgkmcnt(0)
    s_barrier
    ''')
    a.label(f'{name}_end')
    a('s_endpgm')
    kernel_desc(a, name, NV, 102)
    return (name, 256, 768, LDS_K1)
```

```python
from asmlib import *
from k1_gemm1 import f2h, ABL, stamp
import os
SWITCH = int(os.environ.get('SWITCH', '16'))

def gen_attn(a):
    name = 'attn_kernel'
    kernel_head(a, name)
    V_LANE = 1
    V_KA = 2
    V_VA = 3
    V_Q = 4
    V_KF = [8, 12]
    V_VF = [[16, 20], [24, 28]]
    V_S = [32, 48]
    V_P = 64
    V_O = 72
    V_NM = 88
    V_T = [104, 105, 106, 107, 108, 109]
    NV = 112
    L = V_LANE
    t0, t1, t2, t3 = V_T[:4]
    a(f'''
    s_cmp_ge_u32 s2, 256
    s_cbranch_scc1 {name}_end
    s_memtime s[60:61]
    s_memrealtime s[90:91]
    s_load_dwordx2 s[4:5], s[0:1], 72
    s_load_dwordx2 s[70:71], s[0:1], 64
    v_lshrrev_b32 v{t0}, 6, v0
    v_and_b32 v{L}, 63, v0
    s_and_b32 s3, s2, 7
    v_readfirstlane_b32 s14, v{t0}
    s_lshr_b32 s15, s2, 3
    s_cmp_ge_u32 s14, 8
    s_cbranch_scc1 {name}_gemm
    s_setprio 1
    s_and_b32 s12, s15, 3
    s_lshl_b32 s3, s3, 2
    s_add_u32 s12, s12, s3       ; head
    s_lshr_b32 s13, s2, 5        ; qblock
    s_lshl_b32 s13, s13, 3
    s_add_u32 s13, s13, s14      ; qtile
    v_lshlrev_b32 v{V_KA}, 4, v{L}
    s_lshl_b32 s16, s12, 16      ; head*65536
    s_lshl_b32 s17, s13, 10      ; qtile*1024
    s_lshl_b32 s18, s14, 10      ; w*1024
    s_waitcnt lgkmcnt(0)
    s_add_u32 s20, s4, s16
    s_addc_u32 s21, s5, 0
    s_add_u32 s22, s20, s17
    s_addc_u32 s23, s21, 0
    s_add_u32 s22, s22, {WS_Q}
    s_addc_u32 s23, s23, 0
    global_load_dwordx4 {vr(V_Q,4)}, v{V_KA}, s[22:23]
    s_add_u32 s24, s20, s18
    s_addc_u32 s25, s21, 0
    s_add_u32 s26, s24, {WS_V}
    s_addc_u32 s27, s25, 0
    s_add_u32 s24, s24, {WS_K}
    s_addc_u32 s25, s25, 0
    ''')
    for c in range(8):
        a(f'''
        s_add_u32 m0, s18, {c*8192}
        s_nop 0
        global_load_lds_dwordx4 v{V_KA}, s[24:25]
        s_add_u32 m0, s18, {65536 + c*8192}
        s_nop 0
        global_load_lds_dwordx4 v{V_KA}, s[26:27]
        ''')
        if c < 7:
            a('''
            s_add_u32 s24, s24, 8192
            s_addc_u32 s25, s25, 0
            s_add_u32 s26, s26, 8192
            s_addc_u32 s27, s27, 0
            ''')
    a(f'''
    v_lshrrev_b32 v{t0}, 5, v{L}
    v_and_b32 v{t1}, 15, v{L}
    v_lshlrev_b32 v{t1}, 4, v{t1}
    v_lshl_add_u32 v{V_VA}, v{t0}, 8, v{t1}
    v_add_u32 v{V_VA}, 0x10000, v{V_VA}
    s_mov_b32 s28, 0x0000ffff
    s_mov_b32 s29, 0x0000ffff
    ''')
    a(f'''
    v_and_b32 v{t2}, 31, v{L}
    v_mov_b32 v{t3}, 0x3f803f80
    v_cmp_eq_u32 vcc, 16, v{t2}
    v_cndmask_b32 v{t3}, 0, v{t3}, vcc
    ''')
    for s in range(2):
        for h in range(2):
            for i in range(4):
                a(f'v_mov_b32 v{V_VF[s][h]+i}, v{t3}')
    for i in range(16):
        a(f'v_mov_b32 v{V_O+i}, 0')
    def rdK(t, koff):
        a(f'ds_read_b128 {vr(V_KF[t&1],4)}, v{V_KA} offset:{koff}')
    def rdV(t, voff):
        if 'noV' in ABL: return
        if 'noexec' in ABL:
            a(f'ds_read_b128 {vr(V_VF[t&1][0],4)}, v{V_VA} offset:{voff}')
            a(f'ds_read_b128 {vr(V_VF[t&1][1],4)}, v{V_VA} offset:{voff+512}')
            return
        a('s_mov_b64 exec, s[28:29]')
        a(f'ds_read_b128 {vr(V_VF[t&1][0],4)}, v{V_VA} offset:{voff}')
        a(f'ds_read_b128 {vr(V_VF[t&1][1],4)}, v{V_VA} offset:{voff+512}')
        a('s_mov_b64 exec, -1')
    def qk(t, c=None):
        cc = vr(V_NM, 16) if c is None else c
        a(f'v_mfma_f32_32x32x16_bf16 {vr(V_S[t&1],16)}, {vr(V_KF[t&1],4)}, {vr(V_Q,4)}, {cc}')
    a('s_waitcnt vmcnt(12)')
    a('s_barrier')
    stamp(a, 1)
    rdK(0, 0)
    rdK(1, 1024)
    rdV(0, 0)
    a('s_waitcnt lgkmcnt(3)')
    qk(0, '0')
    a('s_nop 15')
    S = V_S[0]
    a(f'v_max3_f32 v{t0}, v{S}, v{S+1}, v{S+2}')
    for i in range(3, 15, 2):
        a(f'v_max3_f32 v{t0}, v{t0}, v{S+i}, v{S+i+1}')
    a(f'v_max_f32 v{t0}, v{t0}, v{S+15}')
    a(f'''
    v_mov_b32 v{t1}, v{t0}
    s_nop 1
    v_permlane32_swap_b32 v{t0}, v{t1}
    s_nop 1
    v_max_f32 v{t0}, v{t0}, v{t1}
    v_add_f32 v{t0}, 0x42b40000, v{t0}
    v_sub_f32 v{t0}, 0, v{t0}
    ''')
    for i in range(16):
        a(f'v_mov_b32 v{V_NM+i}, v{t0}')
    a('s_nop 1')
    qk(0)
    a('s_nop 15')

    def tile(t, koff2, voff1):
        S = V_S[t & 1]
        for i in range(4):
            a(f'v_exp_f32 v{S+i}, v{S+i}')
        a('s_waitcnt lgkmcnt(2)')
        qk(t + 1)
        for i in range(4, 8):
            a(f'v_exp_f32 v{S+i}, v{S+i}')
        rdK(t + 2, koff2)
        for i in range(4):
            a(f'v_cvt_pk_bf16_f32 v{V_P+i}, v{S+2*i}, v{S+2*i+1}')
        a('s_waitcnt lgkmcnt(1)')
        a(f'v_mfma_f32_32x32x16_bf16 {vr(V_O,16)}, {vr(V_VF[t&1][0],4)}, {vr(V_P,4)}, {vr(V_O,16)}')
        for i in range(8, 16):
            a(f'v_exp_f32 v{S+i}, v{S+i}')
        rdV(t + 1, voff1)
        for i in range(4, 8):
            a(f'v_cvt_pk_bf16_f32 v{V_P+i}, v{S+2*i}, v{S+2*i+1}')
        a('s_nop 1')
        a(f'v_mfma_f32_32x32x16_bf16 {vr(V_O,16)}, {vr(V_VF[t&1][1],4)}, {vr(V_P+4,4)}, {vr(V_O,16)}')

    for t in range(16):
        if t == 14:
            a('s_waitcnt vmcnt(0)')
            a('s_barrier')
        tile(t, (t + 2) * 1024, (t + 1) * 1024)
    a(f'''
    v_add_u32 v{V_KA}, 16384, v{V_KA}
    v_add_u32 v{V_VA}, 16384, v{V_VA}
    s_mov_b32 s30, 6
    ''')
    if SWITCH == 16:
        a(f'''
        s_cmp_lt_u32 s14, 4
        s_cbranch_scc1 {name}_loop
        s_setprio 2
        ''')
    stamp(a, 2)
    a.label(f'{name}_loop')
    for t in range(8):
        tile(t, (t + 2) * 1024, (t + 1) * 1024)
        if SWITCH > 16 and (SWITCH - 16 - 1) % 8 == t:
            it = 6 - (SWITCH - 16 - 1) // 8
            a(f'''
            s_cmp_lg_u32 s30, {it}
            s_cbranch_scc1 {name}_nosw
            s_cmp_lt_u32 s14, 4
            s_cbranch_scc1 {name}_nosw
            s_setprio 2
            {name}_nosw:
            ''')
    a(f'''
    v_add_u32 v{V_KA}, 8192, v{V_KA}
    v_add_u32 v{V_VA}, 8192, v{V_VA}
    s_sub_u32 s30, s30, 1
    ''')
    a(f'''
    s_cmp_lg_u32 s30, 0
    s_cbranch_scc1 {name}_loop
    s_nop 15
    s_waitcnt lgkmcnt(0)
    ''')
    stamp(a, 3)
    thr = '0x00000000' if 'forcefb' in ABL else '0x77800000'
    a(f'''
    v_mov_b32 v{t3}, v{V_O+8}
    s_nop 1
    v_permlane32_swap_b32 v{V_O+8}, v{t3}
    s_mov_b32 s31, 0x7e800000
    s_mov_b32 s30, {thr}
    v_cmp_gt_f32 vcc, s30, v{V_O+8}
    s_mov_b64 s[32:33], vcc
    ''')
    for i in range(8):
        a(f'v_cmp_gt_f32 vcc, s31, abs(v{V_O+i})')
        a('s_and_b64 s[32:33], s[32:33], vcc')
    a(f'''
    s_cmp_eq_u64 s[32:33], -1
    s_cbranch_scc0 {name}_fallback
    {name}_final:
    v_rcp_f32 v{t0}, v{V_O+8}
    v_and_b32 v{t1}, 31, v{L}
    v_lshrrev_b32 v{t2}, 5, v{L}
    v_lshlrev_b32 v{t1}, 4, v{t1}
    v_lshl_add_u32 v{t1}, v{t2}, 3, v{t1}
    s_lshl_b32 s16, s13, 5
    s_add_u32 s16, s16, s12
    s_lshl_b32 s16, s16, 10
    s_add_u32 s16, s16, {WS_O}
    s_add_u32 s16, s4, s16
    s_addc_u32 s17, s5, 0
    ''')
    for i in range(8):
        a(f'v_mul_f32 v{V_O+i}, v{V_O+i}, v{t0}')
    for i in range(4):
        a(f'v_cvt_pk_bf16_f32 v{V_P+i}, v{V_O+2*i}, v{V_O+2*i+1}')
    a(f'''
    global_store_dwordx2 v{t1}, {vr(V_P,2)}, s[16:17]
    global_store_dwordx2 v{t1}, {vr(V_P+2,2)}, s[16:17] offset:512
    ''')
    if 'stamp' in ABL:
        a(f'''
        s_waitcnt vmcnt(0)
        s_memtime s[68:69]
        s_waitcnt lgkmcnt(0)
        s_sub_u32 s62, s62, s60
        s_sub_u32 s64, s64, s60
        s_sub_u32 s66, s66, s60
        s_sub_u32 s68, s68, s60
        v_mov_b32 v20, s62
        v_mov_b32 v21, s64
        v_mov_b32 v22, s66
        v_mov_b32 v23, s68
        s_lshl_b32 s72, s14, 4
        v_mov_b32 v24, s72
        s_cmp_lg_u32 s2, 77
        s_cbranch_scc1 {name}_end
        v_cmp_eq_u32 vcc, 0, v1
        s_and_saveexec_b64 s[72:73], vcc
        s_cbranch_execz {name}_end
        global_store_dwordx4 v24, v[20:23], s[70:71]
        ''')
    if 'rt' in ABL: rt_end(a, 2, a.newlabel('rt'))
    a('s_endpgm')
    a.label(f'{name}_fallback')
    S = V_S[0]
    M_ = V_NM
    AL = V_NM + 1
    MN = V_NM + 2
    a(f'''
    v_lshlrev_b32 v{V_KA}, 4, v{L}
    v_lshrrev_b32 v{t0}, 5, v{L}
    v_and_b32 v{t1}, 15, v{L}
    v_lshlrev_b32 v{t1}, 4, v{t1}
    v_lshl_add_u32 v{V_VA}, v{t0}, 8, v{t1}
    v_add_u32 v{V_VA}, 0x10000, v{V_VA}
    v_mov_b32 v{M_}, 0xff7fffff
    s_mov_b32 s30, 0
    ''')
    for i in range(16):
        a(f'v_mov_b32 v{V_O+i}, 0')
    a.label(f'{name}_fbloop')
    rdK(0, 0)
    rdV(0, 0)
    a('s_waitcnt lgkmcnt(0)')
    qk(0, '0')
    a('s_nop 15')
    a('s_nop 3')
    a(f'v_max3_f32 v{MN}, v{S}, v{S+1}, v{S+2}')
    for i in range(3, 15, 2):
        a(f'v_max3_f32 v{MN}, v{MN}, v{S+i}, v{S+i+1}')
    a(f'''
    v_max3_f32 v{MN}, v{MN}, v{S+15}, v{M_}
    v_mov_b32 v{t0}, v{MN}
    s_nop 1
    v_permlane32_swap_b32 v{MN}, v{t0}
    s_nop 1
    v_max_f32 v{MN}, v{MN}, v{t0}
    v_sub_f32 v{AL}, v{M_}, v{MN}
    v_exp_f32 v{AL}, v{AL}
    v_mov_b32 v{M_}, v{MN}
    ''')
    for i in range(16):
        a(f'v_sub_f32 v{S+i}, v{S+i}, v{MN}')
    for i in range(16):
        a(f'v_exp_f32 v{S+i}, v{S+i}')
    for i in range(16):
        a(f'v_mul_f32 v{V_O+i}, v{V_O+i}, v{AL}')
    for i in range(8):
        a(f'v_cvt_pk_bf16_f32 v{V_P+i}, v{S+2*i}, v{S+2*i+1}')
    a('s_nop 1')
    a(f'v_mfma_f32_32x32x16_bf16 {vr(V_O,16)}, {vr(V_VF[0][0],4)}, {vr(V_P,4)}, {vr(V_O,16)}')
    a(f'v_mfma_f32_32x32x16_bf16 {vr(V_O,16)}, {vr(V_VF[0][1],4)}, {vr(V_P+4,4)}, {vr(V_O,16)}')
    a(f'''
    v_add_u32 v{V_KA}, 1024, v{V_KA}
    v_add_u32 v{V_VA}, 1024, v{V_VA}
    s_nop 15
    s_add_u32 s30, s30, 1
    s_cmp_lt_u32 s30, 64
    s_cbranch_scc1 {name}_fbloop
    s_nop 7
    v_mov_b32 v{t3}, v{V_O+8}
    s_nop 1
    v_permlane32_swap_b32 v{V_O+8}, v{t3}
    s_nop 1
    s_branch {name}_final
    ''')
    gen_gemm_waves(a, name)
    a.label(f'{name}_end')
    a('s_endpgm')
    kernel_desc(a, name, 168, 102)
    return (name, 256, 768, 131072 + 16384 + 64)

def gen_gemm_waves(a, name):
    L = 1
    VA = 2
    VX = 3
    T = [4, 5, 6, 7]
    R = [[[8 + 16 * s + 8 * o + 4 * j for j in range(2)] for o in range(2)] for s in range(4)]
    ACC = [[72 + 32 * ns + 16 * ts for ts in range(2)] for ns in range(2)]
    TMP = 136
    XB = 131072
    CNT = XB + 16384
    a.label(f'{name}_gemm')
    if 'nogemm' in ABL:
        a('s_barrier\ns_barrier\ns_endpgm')
    a(f'''
    s_setprio 3
    s_sub_u32 s14, s14, 8            ; gw
    s_and_b32 s12, s15, 3
    s_lshl_b32 s3, s3, 2
    s_add_u32 s12, s12, s3           ; mi
    s_lshr_b32 s13, s15, 2           ; nj
    v_lshlrev_b32 v{VA}, 4, v{L}
    s_mul_i32 s16, s14, 28           ; ks0
    s_lshl_b32 s17, s12, 1
    s_mul_i32 s17, s17, 112
    s_add_u32 s17, s17, s16
    s_lshl_b32 s17, s17, 10
    s_add_u32 s17, s17, {WS_H}
    s_lshl_b32 s18, s13, 1
    s_mul_i32 s18, s18, 112
    s_add_u32 s18, s18, s16
    s_lshl_b32 s18, s18, 10
    s_add_u32 s18, s18, {WS_WD}
    s_waitcnt lgkmcnt(0)
    s_add_u32 s20, s4, s18           ; W ns=0
    s_addc_u32 s21, s5, 0
    s_add_u32 s22, s20, 114688       ; W ns=1
    s_addc_u32 s23, s21, 0
    s_add_u32 s24, s4, s17           ; h ts=0
    s_addc_u32 s25, s5, 0
    s_add_u32 s26, s24, 114688       ; h ts=1
    s_addc_u32 s27, s25, 0
    ''')
    def loads(st):
        for o in range(2):
            for j in range(2):
                sb = 20 + 4 * o + 2 * j
                a(f'global_load_dwordx4 {vr(R[st][o][j],4)}, v{VA}, s[{sb}:{sb+1}] offset:{1024*st}')
    def bump():
        for sb in (20, 22, 24, 26):
            a(f's_add_u32 s{sb}, s{sb}, 4096')
            a(f's_addc_u32 s{sb+1}, s{sb+1}, 0')
    for ns in range(2):
        for ts in range(2):
            for i in range(16):
                a(f'v_mov_b32 v{ACC[ns][ts]+i}, 0')
    a(f'''
    v_mov_b32 v{VX}, {CNT}
    v_mov_b32 v{T[0]}, 0
    s_cmp_lg_u32 s14, 0
    s_cbranch_scc1 {name}_g1
    ds_write_b32 v{VX}, v{T[0]}
    s_waitcnt lgkmcnt(0)
    {name}_g1:
    s_barrier
    s_mov_b32 s30, 0
    ''')
    for st in range(4):
        loads(st)
    bump()
    a.label(f'{name}_gloop')
    for st in range(4):
        a('s_waitcnt vmcnt(12)')
        for ns in range(2):
            for ts in range(2):
                acc = vr(ACC[ns][ts], 16)
                a(f'v_mfma_f32_32x32x16_bf16 {acc}, {vr(R[st][0][ns],4)}, {vr(R[st][1][ts],4)}, {acc}')
        loads(st)
    bump()
    a(f'''
    s_cmp_lg_u32 s30, 0
    s_cbranch_scc1 {name}_g2
    s_barrier
    {name}_g2:
    s_add_u32 s30, s30, 1
    s_cmp_lt_u32 s30, 7
    s_cbranch_scc1 {name}_gloop
    s_memtime s[66:67]
    s_nop 15
    v_add_u32 v{T[1]}, {XB}, v{VA}
    s_cmp_eq_u32 s14, 0
    s_cbranch_scc1 {name}_gw
    ''')
    a(f'''
    {name}_spin:
    ds_read_b32 v{T[0]}, v{VX}
    s_waitcnt lgkmcnt(0)
    v_readfirstlane_b32 s31, v{T[0]}
    s_cmp_ge_u32 s31, s14
    s_cbranch_scc1 {name}_go
    s_sleep 4
    s_branch {name}_spin
    {name}_go:
    ''')
    regs = [ACC[ns][ts] + 4 * q for ns in range(2) for ts in range(2) for q in range(4)]
    for blk in range(4):
        for q in range(4):
            a(f'ds_read_b128 {vr(TMP+4*q,4)}, v{T[1]} offset:{(blk*4+q)*1024}')
        a('s_waitcnt lgkmcnt(0)')
        for q in range(4):
            for i in range(4):
                r = regs[blk * 4 + q] + i
                a(f'v_add_f32 v{r}, v{r}, v{TMP+4*q+i}')
    a(f'''
    s_cmp_eq_u32 s14, 3
    s_cbranch_scc1 {name}_gfin
    {name}_gw:
    ''')
    for idx, r in enumerate(regs):
        a(f'ds_write_b128 v{T[1]}, {vr(r,4)} offset:{idx*1024}')
    a(f'''
    s_add_u32 s31, s14, 1
    v_mov_b32 v{T[0]}, s31
    s_waitcnt lgkmcnt(0)
    ds_write_b32 v{VX}, v{T[0]}
    s_endpgm
    {name}_gfin:
    s_lshl_b32 s16, s12, 5
    s_lshl_b32 s17, s13, 1
    s_add_u32 s16, s16, s17
    s_lshl_b32 s16, s16, 12
    s_add_u32 s16, s16, {WS_F}
    s_add_u32 s16, s4, s16
    s_addc_u32 s17, s5, 0
    s_add_u32 s18, s16, 65536
    s_addc_u32 s19, s17, 0
    v_add_u32 v{T[2]}, 4096, v{VA}
    ''')
    for ns in range(2):
        for ts in range(2):
            for q in range(4):
                sb = 16 + 2 * ts
                va = VA if ns == 0 else T[2]
                a(f'global_store_dwordx4 v{va}, {vr(ACC[ns][ts]+4*q,4)}, s[{sb}:{sb+1}] offset:{q*1024}')
    if 'stamp' in ABL:
        a(f'''
        s_waitcnt vmcnt(0)
        s_memtime s[68:69]
        s_waitcnt lgkmcnt(0)
        s_sub_u32 s68, s68, s60
        s_sub_u32 s66, s66, s60
        v_mov_b32 v20, s66
        v_mov_b32 v21, s68
        v_mov_b32 v24, 128
        s_cmp_lg_u32 s2, 77
        s_cbranch_scc1 {name}_end
        v_cmp_eq_u32 vcc, 0, v1
        s_and_saveexec_b64 s[72:73], vcc
        s_cbranch_execz {name}_end
        global_store_dwordx2 v24, v[20:21], s[70:71]
        ''')
    a('s_endpgm')
```

```python
import sys
from asmlib import *
from k0_ln import gen_ln
from k1_gemm1 import gen_gemm1
from k2_attn import gen_attn
from k3_out import gen_out

HEAD = open('recurrent_scan__softmax_full_mha__glu_gated_geglu__prompt.s.ref').read().split('; Override')[0]

def main(out):
    a = Asm()
    ks = [gen_gemm1(a), gen_attn(a), gen_out(a)]
    import os
    if 'twice' in os.environ.get('ABL',''): ks = [ks[0], ks[1], ks[1], ks[2], ks[3]]
    s = HEAD
    for (n, g, b, l) in ks:
        s += f'; @launch kernel={n} grid=({g},1,1) block=({b},1,1) lds={l}\n'
    s += '.amdgcn_target "amdgcn-amd-amdhsa--gfx950"\n'
    txt = a.text()
    fl = os.environ.get('STFLAG', 'none')
    import re
    parts = re.split(r'(?=\.globl )', txt)
    out_parts = []
    for p in parts:
        for key, kn in (('k1', 'gemm1_kernel'), ('k2', 'attn_kernel'), ('k3', 'outp_kernel')):
            if p.startswith('.globl ' + kn) and key in fl:
                p = re.sub(r'(global_store_dword\S* [^\n]*)', lambda m: m.group(1) + ' nt', p)
        out_parts.append(p)
    txt = ''.join(out_parts)
    s += txt
    open(out, 'w').write(s)
main(sys.argv[1] if len(sys.argv) > 1 else 'recurrent_scan__softmax_full_mha__glu_gated_geglu__prompt.s')
```
